```python
import torch

def _softmax(x, axis=-1):
    return torch.softmax(x, dim=axis)
def _gelu(x):
    return torch.nn.functional.gelu(x, approximate="tanh")
def _silu(x):
    return torch.nn.functional.silu(x)
def _sigmoid(x):
    return torch.sigmoid(x)
def _layernorm(x, axis=-1, eps=1e-5):
    m = x.mean(dim=axis, keepdim=True)
    v = x.var(dim=axis, keepdim=True, unbiased=False)
    return (x - m) / torch.sqrt(v + eps)
def _scatter_add(tgt, idx, src, axis=0):
    return tgt.clone().index_add_(axis, idx, src)
def _segment_sum(src, seg, n):
    out = torch.zeros((n,) + src.shape[1:], dtype=src.dtype)
    return out.index_add_(0, seg, src)
def _pad(x, pw):
    flat = tuple(v for pair in reversed(pw) for v in pair)
    return torch.nn.functional.pad(x, flat)

kernel_name = 'interleave_layers__ssm_conv_h3__glu_gated_bilinear__prompt'

def setup_inputs():

    _w = (lambda a: (lambda t: t.to(torch.bfloat16) if t.is_floating_point() else t)(torch.as_tensor(a)))
    def _A_setup():
        B, S, D = 1, 2048, 640
        ks = 4
        return {
            "q": _w((lambda *s: torch.randn(*s, dtype=torch.bfloat16) * 0.05)(B, S, D)),
            "k": _w((lambda *s: torch.randn(*s, dtype=torch.bfloat16) * 0.2)(B, S, D)),
            "v": _w((lambda *s: torch.randn(*s, dtype=torch.bfloat16) * 0.2)(B, S, D)),
            "shift_k": _w((lambda *s: torch.randn(*s, dtype=torch.bfloat16) * 0.2)(D, ks) * 0.5),
            "ssm_k": _w((lambda *s: torch.randn(*s, dtype=torch.bfloat16) * 0.8)(D, S) * (1.0 / S ** 0.5)),
            "ssm_D": _w((lambda *s: torch.randn(*s, dtype=torch.bfloat16) * 0.2)(D)),
        }
    _A_in = _A_setup()

    def _B_setup():
        B, S, D, F = 1, 2048, 640, 1728
        return {
            "x": _w((lambda *s: torch.randn(*s, dtype=torch.bfloat16) * 0.05)(B, S, D)),
            "w_gate": _w((lambda *s: torch.randn(*s, dtype=torch.bfloat16) * 0.4)(D, F) * (D ** -0.5)),
            "w_up": _w((lambda *s: torch.randn(*s, dtype=torch.bfloat16) * 0.4)(D, F) * (D ** -0.5)),
            "w_down": _w((lambda *s: torch.randn(*s, dtype=torch.bfloat16) * 0.4)(F, D) * (F ** -0.5)),
        }
    _B_in = _B_setup()

    return {
        "A_q": _A_in["q"],
        "A_k": _A_in["k"],
        "A_v": _A_in["v"],
        "A_shift_k": _A_in["shift_k"],
        "A_ssm_k": _A_in["ssm_k"],
        "A_ssm_D": _A_in["ssm_D"],
        "B_x": _B_in["x"],
        "B_w_gate": _B_in["w_gate"],
        "B_w_up": _B_in["w_up"],
        "B_w_down": _B_in["w_down"],
    }

def reference(A_q, A_k, A_v, A_shift_k, A_ssm_k, A_ssm_D, B_x, B_w_gate, B_w_up, B_w_down):
    def _A_ref(q, k, v, shift_k, ssm_k, ssm_D):
        B, S, D = q.shape
        ks = shift_k.shape[-1]
        k_pad = _pad(k, ((0, 0), (ks - 1, 0), (0, 0)))
        k_shift = torch.zeros_like(k)
        for t in range(ks):
            k_shift = k_shift + k_pad[:, t:t + S, :] * shift_k[:, ks - 1 - t][None, None, :]
        kv = k_shift * v
        L = 2 * S
        kv_pad = _pad(kv, ((0, 0), (0, S), (0, 0)))
        kf_pad = _pad(ssm_k, ((0, 0), (0, S)))
        kv_f = (lambda x, axes=(-2,-1): torch.fft.rfft2(x.float(), dim=axes))(kv_pad[:, None, :, :], axes=(1, 2))
        kf_f = (lambda x, axes=(-2,-1): torch.fft.rfft2(x.float(), dim=axes))(kf_pad[:, None, :], axes=(1, 2))
        kf_f = (lambda x, *d: x.permute(*d))(kf_f, 1, 2, 0)
        y_f = kv_f * kf_f[None, :, :, :]
        y = (lambda x, s, axes=(-2,-1): torch.fft.irfft2(x, s=s, dim=axes).to(torch.bfloat16))(y_f, (1, L), axes=(1, 2))[:, 0, :S, :]
        y = y + kv * ssm_D[None, None, :]
        return q * y

    def _B_ref(x, w_gate, w_up, w_down):
        g = torch.einsum("bsd,df->bsf", x, w_gate)
        u = torch.einsum("bsd,df->bsf", x, w_up)
        h = g * u
        return torch.einsum("bsf,fd->bsd", h, w_down)

    x = A_q
    x = x + _A_ref(_layernorm(x, axis=-1), A_k, A_v, A_shift_k, A_ssm_k, A_ssm_D)
    x = x + _B_ref(_layernorm(x, axis=-1), B_w_gate, B_w_up, B_w_down)
    x = x + _A_ref(_layernorm(x, axis=-1), A_k, A_v, A_shift_k, A_ssm_k, A_ssm_D)
    x = x + _B_ref(_layernorm(x, axis=-1), B_w_gate, B_w_up, B_w_down)
    return x
```

```python
class Asm:
    def __init__(self):
        self.lines = []
        self.launches = []
        self.kernels = []
        self.uid = 0

    def __call__(self, s):
        for ln in s.split("\n"):
            ln = ln.strip()
            if not ln:
                continue
            if ln.endswith(":") or ln.startswith("."):
                self.lines.append(ln)
            else:
                self.lines.append("    " + ln)

    def c(self, s):
        self.lines.append("    ; " + s)

    def label(self, base):
        self.uid += 1
        return f"L_{base}_{self.uid}"

    def begin_kernel(self, name):
        self(f".globl {name}")
        self(".p2align 8")
        self(f".type {name},@function")
        self(f"{name}:")

    def end_kernel(self, name, vgpr, sgpr, accum):
        self.kernels.append((name, vgpr, sgpr, accum))

    def srd(self, d, base_lo, base_hi, nbytes, off=0):
        if off:
            self(f"s_add_u32 s{d}, s{base_lo}, {off:#x}")
            self(f"s_addc_u32 s{d+1}, s{base_hi}, 0")
        else:
            self(f"s_mov_b32 s{d}, s{base_lo}")
            self(f"s_mov_b32 s{d+1}, s{base_hi}")
        self(f"s_mov_b32 s{d+2}, {nbytes:#x}")
        self(f"s_mov_b32 s{d+3}, 0x20000")

    def text(self, header):
        out = [header]
        for l in self.launches:
            out.append(l)
        out.append('.amdgcn_target "amdgcn-amd-amdhsa--gfx950"')
        out.append(".text")
        out += self.lines
        out.append('.section .rodata,"a"')
        for name, vgpr, sgpr, accum in self.kernels:
            out.append(".p2align 6")
            out.append(f".amdhsa_kernel {name}")
            out.append(f"  .amdhsa_next_free_vgpr {vgpr}")
            out.append(f"  .amdhsa_next_free_sgpr {sgpr}")
            out.append(f"  .amdhsa_accum_offset {accum}")
            out.append("  .amdhsa_group_segment_fixed_size 0")
            out.append("  .amdhsa_kernarg_size 104")
            out.append("  .amdhsa_user_sgpr_count 2")
            out.append("  .amdhsa_user_sgpr_kernarg_segment_ptr 1")
            out.append("  .amdhsa_system_sgpr_workgroup_id_x 1")
            out.append("  .amdhsa_float_denorm_mode_32 3")
            out.append(".end_amdhsa_kernel")
        return "\n".join(out) + "\n"


def v(i, n=1):
    return f"v{i}" if n == 1 else f"v[{i}:{i+n-1}]"


def a(i, n=1):
    return f"a{i}" if n == 1 else f"a[{i}:{i+n-1}]"


def s(i, n=1):
    return f"s{i}" if n == 1 else f"s[{i}:{i+n-1}]"
```

```python
import sys
from asmlib import Asm, v, a, s

NAME = "interleave_layers__ssm_conv_h3__glu_gated_bilinear__prompt"
WS_XR = 0x0000000; SZ_XR = 640 * 2 * 4096
WS_QX = 0x0500000; SZ_QX = 160 * 2048 * 16
WS_XF = 0x0A00000; SZ_XF = 2048 * 640 * 2
WS_YF = 0x0C80000; SZ_YF = 2048 * 640 * 2
WS_W1 = 0x0F00000; SZ_W1 = 40 * 108 * 1024
WS_CS = 0x1340000; SZ_CS = 108 * 256
WS_W2 = 0x1380000; SZ_W2 = 8 * 54 * 5 * 1024
WS_HF = 0x1600000; SZ_HF = 2048 * 1728 * 2
WS_ST = 0x1D00000; SZ_ST = 2048 * 8 * 8
SZ_SD = 2048 * 640 * 2
EPS = 0x3727c5ac
INV640 = 0x3acccccd


def lane_wave(A, sw=3):
    A(f"v_lshrrev_b32 v1, 6, v0")
    A(f"v_and_b32 v0, 63, v0")
    A(f"v_readfirstlane_b32 s{sw}, v1")


def unpack(A, dlo, dhi, src):
    A(f"v_lshlrev_b32 v{dlo}, 16, v{src}")
    A(f"v_and_b32 v{dhi}, 0xffff0000, v{src}")


def round_bf16(A, d, x):
    A(f"v_cvt_pk_bf16_f32 v{d}, v{x}, v{x}")
    A(f"v_lshlrev_b32 v{d}, 16, v{d}")


def ln_stats(A, vsum, vsq, vm, vr, t):
    A(f"v_mul_f32 v{vsum}, {INV640:#x}, v{vsum}")
    A(f"v_mul_f32 v{vsq}, {INV640:#x}, v{vsq}")
    A(f"v_fma_f32 v{vsq}, -v{vsum}, v{vsum}, v{vsq}")
    A(f"v_max_f32 v{vsq}, 0, v{vsq}")
    round_bf16(A, vm, vsum)
    round_bf16(A, t, vsq)
    A(f"v_add_f32 v{t}, {EPS:#x}, v{t}")
    round_bf16(A, t, t)
    A(f"v_sqrt_f32 v{t}, v{t}")
    A("s_nop 0")
    round_bf16(A, t, t)
    A(f"v_rcp_f32 v{vr}, v{t}")
    A("s_nop 0")


def swap_add(A, x, t, which):
    A(f"v_mov_b32 v{t}, v{x}")
    A("s_nop 1")
    A(f"v_permlane{which}_swap_b32 v{x}, v{t}")
    A("s_nop 1")
    A(f"v_add_f32 v{x}, v{x}, v{t}")


def k_prep(A):
    name = "prep_kernel"
    A.launches.append(f"; @launch kernel={name} grid=(288,1,1) block=(256,1,1) lds=0")
    A.begin_kernel(name)
    Lend = A.label("prep_end"); Lln = A.label("prep_ln")
    A(f"s_cmp_ge_u32 s2, 288")
    A(f"s_cbranch_scc1 {Lend}")
    A("s_load_dwordx8 s[4:11], s[0:1], 0")
    A("s_load_dwordx2 s[12:13], s[0:1], 96")
    lane_wave(A)
    A("s_cmp_ge_u32 s2, 160")
    A(f"s_cbranch_scc1 {Lln}")
    A("s_mul_i32 s14, s2, 205")
    A("s_lshr_b32 s14, s14, 11")
    A("s_mul_i32 s15, s14, 10")
    A("s_sub_u32 s15, s2, s15")
    A("s_lshl_b32 s14, s14, 2")
    A("s_add_u32 s14, s14, s3")
    A("s_lshl_b32 s14, s14, 5")
    A("s_lshl_b32 s15, s15, 6")
    A("v_lshrrev_b32 v1, 4, v0")
    A("v_lshlrev_b32 v1, 3, v1")
    A("v_add_u32 v1, s14, v1")
    A("v_and_b32 v2, 15, v0")
    A("v_lshlrev_b32 v2, 2, v2")
    A("v_add_u32 v2, s15, v2")
    A("v_mul_u32_u24 v3, 1280, v1")
    A("v_lshl_add_u32 v3, v2, 1, v3")
    A("v_subrev_u32 v4, 5120, v3")
    A("v_lshlrev_b32 v5, 3, v2")
    A("v_lshlrev_b32 v6, 13, v2")
    A("v_add_u32 v6, 4080, v6")
    A("v_lshlrev_b32 v7, 1, v1")
    A("v_sub_u32 v6, v6, v7")
    A("s_movk_i32 s40, 5120")
    A("s_waitcnt lgkmcnt(0)")
    A.srd(16, 6, 7, SZ_SD)
    A.srd(20, 8, 9, SZ_SD)
    A.srd(24, 10, 11, 640 * 8)
    A.srd(28, 12, 13, SZ_XR, WS_XR)
    KR, VR, SR, KU, W, KV, VT, O = 8, 32, 52, 64, 112, 128, 164, 172
    A(f"buffer_load_dwordx4 {v(SR,4)}, v5, s[24:27], 0 offen")
    A(f"buffer_load_dwordx4 {v(SR+4,4)}, v5, s[24:27], 0 offen offset:16")
    for r in range(4):
        A(f"buffer_load_dwordx2 {v(KR+2*r,2)}, v4, s[16:19], 0 offen offset:{1280*r}")
    A(f"buffer_load_dwordx2 {v(VR,2)}, v4, s[20:23], 0 offen offset:3840")
    for r in range(8):
        so = "0" if r < 4 else "s40"
        A(f"buffer_load_dwordx2 {v(KR+2*(r+4),2)}, v3, s[16:19], {so} offen offset:{1280*(r&3)}")
        A(f"buffer_load_dwordx2 {v(VR+2*(r+1),2)}, v3, s[20:23], {so} offen offset:{1280*(r&3)}")
    for i in range(8):
        A(f"s_mov_b32 s{32+i}, {i*4096}")
    A("s_waitcnt vmcnt(21)")
    for c in range(4):
        unpack(A, W + 0 + c, W + 4 + c, SR + 2 * c)
        unpack(A, W + 8 + c, W + 12 + c, SR + 2 * c + 1)
    A("s_waitcnt vmcnt(16)")
    for r in range(4):
        unpack(A, KU + 4 * r, KU + 4 * r + 1, KR + 2 * r)
        unpack(A, KU + 4 * r + 2, KU + 4 * r + 3, KR + 2 * r + 1)
    for r in range(-1, 8):
        if r >= 0:
            A(f"s_waitcnt vmcnt({14 - 2*r})")
            ki = r + 4
            unpack(A, KU + 4 * ki, KU + 4 * ki + 1, KR + 2 * ki)
            unpack(A, KU + 4 * ki + 2, KU + 4 * ki + 3, KR + 2 * ki + 1)
        unpack(A, VT, VT + 1, VR + 2 * (r + 1))
        unpack(A, VT + 2, VT + 3, VR + 2 * (r + 1) + 1)
        for p in range(2):
            d = KV + 4 * (r + 1) + 2 * p
            A(f"v_pk_mul_f32 {v(d,2)}, {v(KU+4*(r+4-3)+2*p,2)}, {v(W+12+2*p,2)}")
        for j in (2, 1, 0):
            for p in range(2):
                d = KV + 4 * (r + 1) + 2 * p
                A(f"v_pk_fma_f32 {v(d,2)}, {v(KU+4*(r+4-j)+2*p,2)}, {v(W+4*j+2*p,2)}, {v(d,2)}")
        for p in range(2):
            d = KV + 4 * (r + 1) + 2 * p
            A(f"v_pk_mul_f32 {v(d,2)}, {v(d,2)}, {v(VT+2*p,2)}")
    for c in range(4):
        for p in range(2):
            o = O + 4 * (2 * c + p)
            for i in range(4):
                rlo = 6 + p - 2 * i
                rhi = rlo - 1
                A(f"v_cvt_pk_bf16_f32 v{o+i}, v{KV+4*(rlo+1)+c}, v{KV+4*(rhi+1)+c}")
            A(f"buffer_store_dwordx4 {v(o,4)}, v6, s[28:31], s{32+2*c+p} offen")
    A("s_endpgm")
    A(f"{Lln}:")
    A("s_sub_u32 s14, s2, 160")
    A("s_lshl_b32 s14, s14, 2")
    A("s_add_u32 s14, s14, s3")
    A("s_lshl_b32 s14, s14, 2")
    A("v_and_b32 v1, 3, v0")
    A("v_add_u32 v1, s14, v1")
    A("v_lshrrev_b32 v2, 2, v0")
    A("v_mul_u32_u24 v3, 1280, v1")
    A("v_lshl_add_u32 v3, v2, 4, v3")
    A("v_lshlrev_b32 v4, 16, v2")
    A("v_lshl_add_u32 v4, v1, 4, v4")
    A("s_waitcnt lgkmcnt(0)")
    A.srd(16, 4, 5, SZ_SD)
    A.srd(20, 12, 13, SZ_QX, WS_QX)
    T, X, Q = 8, 32, 72
    for i in range(5):
        A(f"buffer_load_dwordx4 {v(T+4*i,4)}, v3, s[16:19], 0 offen offset:{256*i}")
    for i in range(10):
        A(f"s_mov_b32 s{32+i}, {(32*(i>>1)+(i&1))*32768}")
    A("v_mov_b32 v112, 0\nv_mov_b32 v113, 0\nv_mov_b32 v114, 0\nv_mov_b32 v115, 0")
    for i in range(5):
        A(f"s_waitcnt vmcnt({4-i})")
        for j in range(4):
            x = X + 8 * i + 2 * j
            unpack(A, x, x + 1, T + 4 * i + j)
            A(f"v_pk_add_f32 v[112:113], v[112:113], {v(x,2)}")
            A(f"v_pk_fma_f32 v[114:115], {v(x,2)}, {v(x,2)}, v[114:115]")
    A("v_add_f32 v112, v112, v113")
    A("v_add_f32 v114, v114, v115")
    A("s_nop 1")
    for ror in (4, 8):
        A(f"v_add_f32_dpp v112, v112, v112 row_ror:{ror} row_mask:0xf bank_mask:0xf")
        A(f"v_add_f32_dpp v114, v114, v114 row_ror:{ror} row_mask:0xf bank_mask:0xf")
        A("s_nop 1")
    for w in (16, 32):
        swap_add(A, 112, 113, w)
        swap_add(A, 114, 115, w)
    ln_stats(A, 112, 114, 116, 118, 113)
    A("v_mov_b32 v117, v116")
    A("v_mov_b32 v119, v118")
    for i in range(5):
        for g in range(2):
            q = Q + 4 * (2 * i + g)
            A(f"v_mov_b32 v{q}, v{T+4*i+2*g}")
            A(f"v_mov_b32 v{q+1}, v{T+4*i+2*g+1}")
            for j in range(2):
                x = X + 8 * i + 4 * g + 2 * j
                A(f"v_pk_add_f32 {v(x,2)}, {v(x,2)}, v[116:117] neg_lo:[0,1] neg_hi:[0,1]")
                A(f"v_pk_mul_f32 {v(x,2)}, {v(x,2)}, v[118:119]")
                A(f"v_cvt_pk_bf16_f32 v{q+2+j}, v{x}, v{x+1}")
            A(f"buffer_store_dwordx4 {v(q,4)}, v4, s[20:23], s{32+2*i+g} offen")
    A(f"{Lend}:")
    A("s_endpgm")
    A.end_kernel(name, 208, 48, 208)


CH_LDS = 25920
def k_conv(A):
    name = "conv_kernel"
    A.launches.append(f"; @launch kernel={name} grid=(241,1,1) block=(256,1,1) lds={4*CH_LDS}")
    A.begin_kernel(name)
    Lend = A.label("conv_end"); Lw1 = A.label("conv_w1"); Lw2 = A.label("conv_w2")
    A("s_cmp_ge_u32 s2, 241")
    A(f"s_cbranch_scc1 {Lend}")
    A("s_load_dwordx4 s[4:7], s[0:1], 32")
    A("s_load_dwordx4 s[8:11], s[0:1], 56")
    A("s_load_dwordx2 s[12:13], s[0:1], 72")
    A("s_load_dwordx2 s[14:15], s[0:1], 96")
    lane_wave(A)
    A("s_cmp_ge_u32 s2, 214")
    A(f"s_cbranch_scc1 {Lw2}")
    A("s_cmp_ge_u32 s2, 160")
    A(f"s_cbranch_scc1 {Lw1}")
    A("s_and_b32 s16, s2, 7")
    A("s_mul_i32 s16, s16, 20")
    A("s_lshr_b32 s17, s2, 3")
    A("s_add_u32 s16, s16, s17")
    A("s_lshl_b32 s17, s16, 2")
    A("s_add_u32 s17, s17, s3")
    A(f"s_mul_i32 s18, s3, {CH_LDS}")
    A("v_lshlrev_b32 v2, 4, v0")
    A("s_waitcnt lgkmcnt(0)")
    A("s_sub_u32 s20, s4, 12")
    A("s_subb_u32 s21, s5, 0")
    A(f"s_mov_b32 s22, {640*4096+12:#x}")
    A("s_mov_b32 s23, 0x20000")
    A.srd(24, 6, 7, 1280)
    A.srd(28, 14, 15, SZ_XR, WS_XR)
    A.srd(32, 14, 15, SZ_QX, WS_QX)
    A.srd(36, 14, 15, SZ_XF, WS_XF)
    A.srd(40, 14, 15, SZ_YF, WS_YF)
    A("s_lshl_b32 s44, s17, 12")
    A("s_lshl_b32 s45, s17, 13")
    A("s_lshl_b32 s46, s17, 1")
    A("v_mov_b32 v3, 0")
    A("s_add_u32 s47, s44, 12")
    A("buffer_load_dwordx4 v[8:11], v3, s[20:23], s47 offen")
    A("buffer_load_ushort v12, v3, s[24:27], s46 offen")
    for p in range(2):
        A(f"s_add_u32 m0, s18, {16640+4640*p}")
        A(f"s_add_u32 s47, s45, {4096*p}")
        for i in range(4):
            A(f"buffer_load_dwordx4 v2, s[28:31], s47 offen offset:{1024*i} lds")
    for c in range(4):
        A(f"s_add_u32 m0, s18, {4160*c+48}")
        A(f"s_add_u32 s47, s44, {4*c}")
        for i in range(4):
            if i == 0 and c < 3:
                A("s_mov_b64 exec, -2")
            A(f"buffer_load_dwordx4 v2, s[20:23], s47 offen offset:{1024*i} lds")
            if i == 0 and c < 3:
                A("s_mov_b64 exec, -1")
    QXR = 176
    A("v_and_b32 v4, 3, v0")
    A("v_lshlrev_b32 v4, 1, v4")
    A("v_bfe_u32 v5, v0, 2, 1")
    A("v_add_u32 v4, v4, v5")
    A("v_and_b32 v5, 0x38, v0")
    A("v_add_u32 v4, v4, v5")
    A("v_lshlrev_b32 v5, 4, v4")
    A("s_lshl_b32 s47, s16, 15")
    A("s_lshl_b32 s48, s3, 13")
    A("s_add_u32 s47, s47, s48")
    A("s_add_u32 s48, s47, 4096")
    for i in range(8):
        A(f"buffer_load_dwordx4 {v(QXR+4*i,4)}, v5, s[32:35], s{47+(i>>2)} offen offset:{1024*(i&3)}")
    A("v_mov_b32 v16, 0\nv_mov_b32 v17, 0\nv_mov_b32 v18, 0\nv_mov_b32 v19, 0")
    A("v_and_b32 v6, 31, v0")
    A("v_min_u32 v6, 27, v6")
    A("v_lshlrev_b32 v6, 4, v6")
    A("v_lshrrev_b32 v7, 5, v0")
    A("v_mul_u32_u24 v7, 4640, v7")
    A("v_add3_u32 v6, v6, v7, s18")
    A(f"ds_write_b128 v6, v[16:19] offset:{16640+4096}")
    A("v_and_b32 v6, 3, v0")
    A("v_mul_u32_u24 v6, 4160, v6")
    A("v_lshrrev_b32 v7, 2, v0")
    A("v_min_u32 v7, 2, v7")
    A("v_lshlrev_b32 v7, 4, v7")
    A("v_add3_u32 v6, v6, v7, s18")
    A("ds_write_b128 v6, v[16:19]")
    A("v_and_b32 v6, 3, v0")
    A("v_mul_u32_u24 v6, 4160, v6")
    A("v_bfe_u32 v7, v0, 2, 2")
    A("v_lshrrev_b32 v13, 4, v0")
    A("v_add_u32 v7, v7, v13")
    A("v_lshlrev_b32 v7, 4, v7")
    A("v_add3_u32 v20, v6, v7, s18")
    A("v_and_b32 v6, 1, v0")
    A("v_mul_u32_u24 v6, 4640, v6")
    A("v_bfe_u32 v7, v0, 1, 3")
    A("v_lshlrev_b32 v7, 6, v7")
    A("v_sub_u32 v6, v6, v7")
    A("v_lshl_add_u32 v6, v13, 4, v6")
    A(f"v_add_u32 v6, {16640+448}, v6")
    A("v_add_u32 v21, s18, v6")
    A("s_waitcnt vmcnt(32)")
    A("v_mov_b32 v22, s18")
    A("v_mov_b32 v24, 0\nv_mov_b32 v25, v8\nv_mov_b32 v26, v9\nv_mov_b32 v27, v10")
    A("v_mov_b32 v28, 0\nv_mov_b32 v29, 0\nv_mov_b32 v30, v8\nv_mov_b32 v31, v9")
    A("v_mov_b32 v19, v8")
    A("s_mov_b64 exec, 1")
    A(f"ds_write_b128 v22, v[24:27] offset:{2*4160+48}")
    A(f"ds_write_b128 v22, v[28:31] offset:{1*4160+48}")
    A(f"ds_write_b128 v22, v[16:19] offset:48")
    A("s_mov_b64 exec, -1")
    AD = 32
    A("v_and_b32 v6, 15, v0")
    A("v_lshl_add_u32 v6, v13, 2, v6")
    for i in range(4):
        A(f"v_cmp_eq_u32 s[{50+2*i}:{51+2*i}], {15-i}, v6")
    A("s_nop 1")
    for i in range(4):
        A(f"v_cndmask_b32 v{AD+i}, 0, v12, s[{50+2*i}:{51+2*i}]")
    ACC = 208
    FA = [48, 112]; FB = [80, 144]
    A("s_waitcnt vmcnt(8) lgkmcnt(0)")

    def rdA(buf, jp, i):
        A(f"ds_read_b128 {v(FA[buf]+4*i,4)}, v20 offset:{64*jp+512*i}")

    def rdB(buf, jp, d):
        A(f"ds_read_b128 {v(FB[buf]+4*d,4)}, v21 offset:{512*(7-d)+64*jp}")
    for i in range(8):
        rdB(0, 0, i)
    A("s_waitcnt lgkmcnt(0)")
    for i in range(8):
        rdA(0, 0, i)
    for nt in range(8):
        A(f"v_mfma_f32_16x16x32_bf16 {v(ACC+4*nt,4)}, {v(AD,4)}, {v(FB[0]+4*nt,4)}, 0")
    for jp in range(8):
        b = jp & 1
        A("s_waitcnt lgkmcnt(0)")
        reads = []
        if jp < 7:
            for i in range(8):
                reads.append(("A", i)); reads.append(("B", i))
        n = 0
        for i in range(8):
            for nt in range(i, 8):
                A(f"v_mfma_f32_16x16x32_bf16 {v(ACC+4*nt,4)}, {v(FA[b]+4*i,4)}, {v(FB[b]+4*(nt-i),4)}, {v(ACC+4*nt,4)}")
                n += 1
                if reads and n % 2 == 1:
                    if len(reads) == 1:
                        A("s_waitcnt lgkmcnt(8)")
                    kind, idx = reads.pop(0)
                    (rdA if kind == "A" else rdB)(1 - b, jp + 1, idx)
        assert not reads
    A("v_bfe_u32 v6, v0, 1, 3")
    A("v_lshlrev_b32 v6, 6, v6")
    A("v_lshl_add_u32 v6, v13, 4, v6")
    A("v_and_b32 v7, 1, v0")
    A("v_lshl_add_u32 v6, v7, 3, v6")
    A("v_add_u32 v6, s18, v6")
    A("v_bfe_u32 v7, v0, 2, 2")
    A(f"v_mul_u32_u24 v7, {CH_LDS}, v7")
    A("v_lshl_add_u32 v7, v13, 5, v7")
    A("v_and_b32 v14, 3, v0")
    A("v_lshl_add_u32 v7, v14, 3, v7")
    A("s_lshl_b32 s47, s3, 10")
    A("v_add_u32 v7, s47, v7")
    for nt in range(8):
        A(f"v_cvt_pk_bf16_f32 v{48+2*nt}, v{ACC+4*nt}, v{ACC+4*nt+1}")
        A(f"v_cvt_pk_bf16_f32 v{48+2*nt+1}, v{ACC+4*nt+2}, v{ACC+4*nt+3}")
        A(f"ds_write_b64 v6, {v(48+2*nt,2)} offset:{512*nt}")
    A("v_and_b32 v14, 31, v4")
    A("v_lshlrev_b32 v14, 4, v14")
    A("v_lshrrev_b32 v15, 5, v0")
    A("v_mul_u32_u24 v15, 40960, v15")
    A("v_add_u32 v14, v14, v15")
    A(f"s_mul_i32 s47, s3, {16*40960}")
    A("s_lshr_b32 s48, s16, 1")
    A("s_lshl_b32 s48, s48, 9")
    A("s_add_u32 s47, s47, s48")
    A("s_and_b32 s48, s16, 1")
    A("s_lshl_b32 s48, s48, 3")
    A("s_add_u32 s47, s47, s48")
    A("s_waitcnt lgkmcnt(0)")
    A("s_barrier")
    YR = 64
    for i in range(8):
        A(f"ds_read_b64_tr_b16 {v(YR+2*i,2)}, v7 offset:{128*i}")
    A("s_waitcnt vmcnt(0)")
    for i in range(8):
        A(f"s_waitcnt lgkmcnt({7-i})")
        t = 80 + 16 * (i & 1)
        A(f"buffer_store_dwordx2 {v(YR+2*i,2)}, v14, s[40:43], s47 offen")
        for j in range(2):
            unpack(A, t + 2 * j, t + 2 * j + 1, YR + 2 * i + j)
            unpack(A, t + 4 + 2 * j, t + 4 + 2 * j + 1, QXR + 4 * i + j)
            unpack(A, t + 8 + 2 * j, t + 8 + 2 * j + 1, QXR + 4 * i + 2 + j)
            A(f"v_pk_fma_f32 {v(t+2*j,2)}, {v(t+2*j,2)}, {v(t+8+2*j,2)}, {v(t+4+2*j,2)}")
            A(f"v_cvt_pk_bf16_f32 v{QXR+4*i+j}, v{t+2*j}, v{t+2*j+1}")
        A(f"buffer_store_dwordx2 {v(QXR+4*i,2)}, v14, s[36:39], s47 offen")
        A(f"s_add_u32 s47, s47, {2*40960}")
    A("s_endpgm")

    A(f"{Lw1}:")
    A("s_sub_u32 s16, s2, 160")
    A("s_cmp_ge_u32 s16, 27")
    A("s_cselect_b32 s17, 1, 0")
    A("s_mul_i32 s18, s17, 27")
    A("s_sub_u32 s16, s16, s18")
    A("s_waitcnt lgkmcnt(0)")
    A("s_cmp_eq_u32 s17, 1")
    A("s_cselect_b32 s20, s10, s8")
    A("s_cselect_b32 s21, s11, s9")
    A(f"s_mov_b32 s22, {640*3456:#x}")
    A("s_mov_b32 s23, 0x20000")
    A.srd(24, 14, 15, SZ_W1, WS_W1)
    A.srd(28, 14, 15, SZ_CS, WS_CS)
    A("v_lshrrev_b32 v2, 3, v0")
    A("v_mul_u32_u24 v2, 3456, v2")
    A("v_and_b32 v3, 7, v0")
    A("v_lshl_add_u32 v2, v3, 4, v2")
    A(f"s_mul_i32 s32, s3, {160*3456}")
    A("s_lshl_b32 s33, s16, 7")
    A("s_add_u32 s32, s32, s33")
    A("s_mul_i32 s33, s3, 20480")
    for i in range(20):
        A(f"s_add_u32 m0, s33, {1024*i}")
        A("s_nop 0")
        A("buffer_load_dwordx4 v2, s[20:23], s32 offen lds")
        A(f"s_add_u32 s32, s32, {8*3456}")
    A("v_lshrrev_b32 v4, 4, v0")
    A("v_bfe_u32 v5, v0, 2, 2")
    A("v_lshl_add_u32 v5, v4, 3, v5")
    A("v_lshlrev_b32 v5, 7, v5")
    A("v_and_b32 v6, 1, v0")
    A("v_lshl_add_u32 v5, v6, 4, v5")
    A("v_bfe_u32 v6, v0, 1, 1")
    A("v_lshl_add_u32 v5, v6, 3, v5")
    A("v_add_u32 v5, s33, v5")
    A("v_lshrrev_b32 v6, 5, v0")
    A(f"v_mul_u32_u24 v6, {108*1024}, v6")
    A("v_bfe_u32 v7, v0, 4, 1")
    A("v_lshl_add_u32 v6, v7, 9, v6")
    A("v_and_b32 v7, 15, v0")
    A("v_lshl_add_u32 v6, v7, 4, v6")
    A(f"s_mul_i32 s34, s3, {10*108*1024}")
    A("s_lshl_b32 s35, s16, 12")
    A("s_add_u32 s34, s34, s35")
    A("s_lshl_b32 s35, s17, 8")
    A("s_add_u32 s34, s34, s35")
    A("v_mov_b32 v8, 0x3f803f80")
    for uu in range(4):
        A(f"v_mov_b32 v{12+uu}, 0")
    F = 16
    for pair in range(5):
        A("s_waitcnt vmcnt(16)")
        for uu in range(4):
            f = F + 16 * pair + 4 * uu
            A(f"ds_read_b64_tr_b16 {v(f,2)}, v5 offset:{4096*pair+32*uu}")
            A(f"ds_read_b64_tr_b16 {v(f+2,2)}, v5 offset:{4096*pair+32*uu+512}")
        for uu in range(4):
            f = F + 16 * pair + 4 * uu
            A(f"s_waitcnt lgkmcnt({6-2*uu})")
            A(f"buffer_store_dwordx4 {v(f,4)}, v6, s[24:27], s34 offen offset:{1024*uu}")
            for j in range(4):
                A(f"v_dot2c_f32_bf16 v{12+uu}, v{f+j}, v8")
        A(f"s_add_u32 s34, s34, {2*108*1024}")
    A("s_nop 2")
    for uu in range(4):
        swap_add(A, 12 + uu, 9, 16)
        swap_add(A, 12 + uu, 9, 32)
    A("v_and_b32 v7, 15, v0")
    A("v_lshlrev_b32 v9, 4, v7")
    A("s_lshl_b32 s35, s3, 8")
    A("s_add_u32 s35, s35, 81920")
    A("v_add_u32 v10, s35, v9")
    A("ds_write_b128 v10, v[12:15]")
    A("s_waitcnt lgkmcnt(0)")
    A("s_barrier")
    A("s_cmp_lg_u32 s3, 0")
    A(f"s_cbranch_scc1 {Lend}")
    A("v_lshl_add_u32 v10, v4, 2, v9")
    A("v_add_u32 v10, 81920, v10")
    for w in range(4):
        A(f"ds_read_b32 v{12+w}, v10 offset:{256*w}")
    A("s_waitcnt lgkmcnt(0)")
    A("v_add_f32 v12, v12, v13")
    A("v_add_f32 v14, v14, v15")
    A("v_add_f32 v12, v12, v14")
    A("v_sub_f32 v12, 0, v12")
    round_bf16(A, 13, 12)
    A("v_sub_f32 v12, v12, v13")
    round_bf16(A, 14, 12)
    A("v_sub_f32 v12, v12, v14")
    A("v_cvt_pk_bf16_f32 v16, v13, v14")
    A("v_mov_b32 v15, 0")
    A("v_cvt_pk_bf16_f32 v17, v12, v15")
    A("v_lshlrev_b32 v10, 8, v4")
    A("v_lshl_add_u32 v10, v7, 3, v10")
    A("s_lshl_b32 s35, s16, 10")
    A("s_lshl_b32 s36, s17, 7")
    A("s_add_u32 s35, s35, s36")
    A("buffer_store_dwordx2 v[16:17], v10, s[28:31], s35 offen")
    A("s_endpgm")

    A(f"{Lw2}:")
    A("s_sub_u32 s16, s2, 214")
    A("s_waitcnt lgkmcnt(0)")
    A.srd(20, 12, 13, 1728 * 1280)
    A.srd(24, 14, 15, SZ_W2, WS_W2)
    A("v_lshlrev_b32 v2, 4, v0")
    A("s_mul_i32 s32, s16, 81920")
    A("s_mul_i32 s33, s3, 20480")
    A("s_add_u32 s32, s32, s33")
    for i in range(5):
        A(f"s_add_u32 m0, s33, {4096*i}")
        A("s_nop 0")
        for j in range(4):
            A(f"buffer_load_dwordx4 v2, s[20:23], s32 offen offset:{1024*j} lds")
        A("s_add_u32 s32, s32, 4096")
    A("v_lshrrev_b32 v4, 4, v0")
    A("v_bfe_u32 v5, v0, 2, 2")
    A("v_lshl_add_u32 v5, v4, 3, v5")
    A("v_mul_u32_u24 v5, 1280, v5")
    A("s_lshr_b32 s34, s3, 1")
    A("s_mul_i32 s35, s34, 40960")
    A("s_and_b32 s36, s3, 1")
    A("s_mul_i32 s37, s36, 640")
    A("s_add_u32 s35, s35, s37")
    A("v_add_u32 v5, s35, v5")
    A("v_and_b32 v6, 3, v0")
    A("v_lshl_add_u32 v7, v6, 3, v5")
    A("v_lshl_add_u32 v5, v6, 4, v5")
    A(f"s_mul_i32 s37, s36, {4*54*5120}")
    A("s_lshl_b32 s38, s16, 1")
    A("s_add_u32 s38, s38, s34")
    A("s_mul_i32 s38, s38, 5120")
    A("s_add_u32 s37, s37, s38")
    A("v_add_u32 v3, 4096, v2")
    A("s_waitcnt vmcnt(0)")
    A("s_barrier")
    F = 16
    for sl in range(4):
        for t in range(5):
            f = F + 20 * sl + 4 * t
            ad = "v5" if t < 4 else "v7"
            off = 160 * sl + (64 * (t >> 1) + 8 * (t & 1) if t < 4 else 128)
            A(f"ds_read_b64_tr_b16 {v(f,2)}, {ad} offset:{off}")
            A(f"ds_read_b64_tr_b16 {v(f+2,2)}, {ad} offset:{off+5120}")
        for t in range(5):
            f = F + 20 * sl + 4 * t
            A(f"s_waitcnt lgkmcnt({8-2*t})")
            if t < 4:
                A(f"buffer_store_dwordx4 {v(f,4)}, v2, s[24:27], s37 offen offset:{1024*t}")
            else:
                A(f"buffer_store_dwordx4 {v(f,4)}, v3, s[24:27], s37 offen")
        A(f"s_add_u32 s37, s37, {54*5120}")
    A(f"{Lend}:")
    A("s_endpgm")
    A.end_kernel(name, 240, 64, 240)


def k_g1(A):
    name = "g1_kernel"
    A.begin_kernel(name)
    Lend = A.label("g1_end")
    A("s_cmp_ge_u32 s2, 256")
    A(f"s_cbranch_scc1 {Lend}")
    A("s_load_dwordx2 s[4:5], s[0:1], 96")
    lane_wave(A)
    A("s_and_b32 s6, s2, 7")
    A("s_lshr_b32 s7, s2, 3")
    A("s_and_b32 s24, s6, 1")
    A("s_lshl_b32 s24, s24, 3")
    A("s_and_b32 s25, s7, 7")
    A("s_add_u32 s24, s24, s25")
    A("s_lshr_b32 s25, s6, 1")
    A("s_lshl_b32 s25, s25, 2")
    A("s_lshr_b32 s26, s7, 3")
    A("s_add_u32 s25, s25, s26")
    A("s_mul_i32 s25, s25, 7")
    A("s_min_u32 s25, s25, 101")
    A("s_mul_i32 s26, s3, 108")
    A("s_add_u32 s26, s26, s25")
    A("s_lshl_b32 s26, s26, 10")
    A("s_lshl_b32 s27, s24, 2")
    A("s_add_u32 s27, s27, s3")
    A("s_mul_i32 s27, s27, 40960")
    A("s_mul_i32 s28, s3, 7168")
    A("s_lshl_b32 s29, s25, 8")
    A("v_lshlrev_b32 v2, 4, v0")
    A("v_and_b32 v3, 31, v0")
    A("v_lshlrev_b32 v3, 3, v3")
    A("s_waitcnt lgkmcnt(0)")
    A.srd(8, 4, 5, SZ_W1, WS_W1)
    A.srd(12, 4, 5, SZ_XF, WS_XF)
    A.srd(16, 4, 5, SZ_HF, WS_HF)
    A.srd(20, 4, 5, SZ_CS, WS_CS)
    ACC, XR_, CSR = 16, 128, 208
    for u in range(7):
        A(f"buffer_load_dwordx2 {v(CSR+2*u,2)}, v3, s[20:23], s29 offen offset:{256*u}")

    def group_ops(g):
        slot = g % 5
        ops = []
        for i in range(4):
            ops.append(f"buffer_load_dwordx4 {v(XR_+16*slot+4*i,4)}, v2, s[12:15], s27 offen offset:{1024*i}")
        for u in range(7):
            pre = ""
            if u == 0:
                pre = f"s_add_u32 m0, s28, {slot*28672}\ns_nop 0\n"
            if u == 4:
                pre = f"s_add_u32 m0, s28, {slot*28672+4096}\ns_add_u32 s26, s26, 4096\n"
            ops.append(pre + f"buffer_load_dwordx4 v2, s[8:11], s26 offen offset:{1024*(u&3)} lds")
        ops[-1] += f"\ns_add_u32 s26, s26, {4*108*1024-4096}\ns_add_u32 s27, s27, 4096"
        return ops
    for g in range(5):
        for op in group_ops(g):
            A(op)
    A("v_mov_b32 v4, 0\nv_mov_b32 v5, 0\nv_mov_b32 v6, 0\nv_mov_b32 v7, 0")
    A("v_mov_b32 v8, 0x3f803f80")
    A("s_waitcnt vmcnt(44)")
    A("s_barrier")

    def rd(k, u):
        st = k // 4
        off = (st % 5) * 28672 + (k % 4) * 7168 + u * 1024
        base = ["v2", "v9", "v10"][off >> 16]
        A(f"ds_read_b128 {a(28*(k&1)+4*u,4)}, {base} offset:{off & 0xffff}")
    A("v_add_u32 v9, 0x10000, v2")
    A("v_add_u32 v10, 0x20000, v2")
    for u in range(7):
        rd(0, u)
    pending = []
    for k in range(40):
        st = k // 4
        if k % 4 == 3 and st < 9:
            n = {0: 33, 7: 11, 8: 0}.get(st, 22)
            assert not pending
            A(f"s_waitcnt vmcnt({n})")
            A("s_barrier")
            if 1 <= st <= 5:
                pending = group_ops(st + 4)
        xf = XR_ + 16 * (st % 5) + 4 * (k % 4)
        for u in range(7):
            if k < 39:
                A("s_waitcnt lgkmcnt(6)")
            else:
                A(f"s_waitcnt lgkmcnt({6-u})")
            src = "0" if k == 0 else v(ACC + 16 * u, 16)
            A(f"v_mfma_f32_32x32x16_bf16 {v(ACC+16*u,16)}, {a(28*(k&1)+4*u,4)}, {v(xf,4)}, {src}")
            if k < 39:
                rd(k + 1, u)
            if u < 4:
                A(f"v_dot2c_f32_bf16 v{4+(u&1)}, v{xf+u}, v8")
                A(f"v_dot2c_f32_bf16 v{6+(u&1)}, v{xf+u}, v{xf+u}")
            if pending and (u & 1) == 0:
                A(pending.pop(0))
    A("v_add_f32 v4, v4, v5")
    A("v_add_f32 v6, v6, v7")
    swap_add(A, 4, 5, 32)
    swap_add(A, 6, 7, 32)
    ln_stats(A, 4, 6, 11, 12, 5)
    A("v_mul_f32 v12, v12, v12")
    A("v_mov_b32 v13, v12")
    A("v_cmp_gt_u32 vcc, 32, v0")
    A("v_lshrrev_b32 v5, 16, v11")
    A("v_or_b32 v4, v11, v5")
    A("v_cndmask_b32 v14, 0, v4, vcc")
    A("v_cndmask_b32 v15, 0, v5, vcc")
    A("v_bfe_u32 v4, v0, 4, 1")
    A("v_lshlrev_b32 v4, 10, v4")
    A("v_lshrrev_b32 v5, 5, v0")
    A("v_lshl_add_u32 v4, v5, 8, v4")
    A("v_and_b32 v5, 15, v0")
    A("v_lshl_add_u32 v4, v5, 4, v4")
    for u in range(7):
        A(f"v_mfma_f32_32x32x8_bf16 {v(ACC+16*u,16)}, {v(CSR+2*u,2)}, v[14:15], {v(ACC+16*u,16)}")
    A("s_lshl_b32 s30, s24, 1")
    A("s_lshr_b32 s31, s3, 1")
    A("s_add_u32 s30, s30, s31")
    A("s_mul_i32 s30, s30, 221184")
    A("s_and_b32 s31, s3, 1")
    A("s_lshl_b32 s31, s31, 11")
    A("s_add_u32 s30, s30, s31")
    A("s_nop 4")
    for u in range(7):
        c = ACC + 16 * u
        A(f"s_add_u32 s31, s25, {u}")
        A("s_lshr_b32 s32, s31, 1")
        A("s_lshl_b32 s32, s32, 12")
        A("s_and_b32 s31, s31, 1")
        A("s_lshl_b32 s31, s31, 9")
        A("s_add_u32 s31, s31, s32")
        A("s_add_u32 s31, s31, s30")
        for j in range(4):
            A(f"v_pk_mul_f32 {v(c+2*j,2)}, {v(c+2*j,2)}, {v(c+8+2*j,2)}")
        for j in range(4):
            A(f"v_pk_mul_f32 {v(c+2*j,2)}, {v(c+2*j,2)}, v[12:13]")
        for j in range(4):
            A(f"v_cvt_pk_bf16_f32 v{c+8+j}, v{c+2*j}, v{c+2*j+1}")
        A(f"buffer_store_dwordx4 {v(c+8,4)}, v4, s[16:19], s31 offen")
    A(f"{Lend}:")
    A("s_endpgm")
    A.end_kernel(name, 224 + 56, 48, 224)


def k_g2(A, final):
    name = "g2b_kernel" if final else "g2a_kernel"
    A.begin_kernel(name)
    Lend = A.label("g2_end")
    A("s_cmp_ge_u32 s2, 256")
    A(f"s_cbranch_scc1 {Lend}")
    A("s_load_dwordx2 s[4:5], s[0:1], 96")
    A("s_load_dwordx2 s[6:7], s[0:1], 80")
    lane_wave(A)
    A("s_and_b32 s24, s2, 7")
    A("s_lshr_b32 s25, s2, 3")
    A("s_and_b32 s26, s24, 1")
    A("s_lshl_b32 s26, s26, 4")
    A("s_bfe_u32 s27, s24, 0x10001")
    A("s_lshl_b32 s27, s27, 3")
    A("s_add_u32 s26, s26, s27")
    A("s_and_b32 s27, s25, 7")
    A("s_add_u32 s26, s26, s27")
    A("s_lshr_b32 s27, s24, 2")
    A("s_lshl_b32 s27, s27, 2")
    A("s_lshr_b32 s28, s25, 3")
    A("s_add_u32 s27, s27, s28")
    A("s_mul_i32 s28, s3, 14")
    A("s_cmp_eq_u32 s3, 3")
    A("s_cselect_b32 s29, 1, 0")
    A("s_sub_u32 s28, s28, s29")
    A("s_mul_i32 s30, s26, 221184")
    A("s_lshl_b32 s29, s28, 12")
    A("s_add_u32 s30, s30, s29")
    A("s_mul_i32 s31, s27, 54")
    A("s_add_u32 s31, s31, s28")
    A("s_mul_i32 s31, s31, 5120")
    A("v_lshlrev_b32 v2, 4, v0")
    A("v_add_u32 v3, 4096, v2")
    for i in range(4):
        A(f"s_add_u32 s29, s3, {i}")
        A("s_and_b32 s29, s29, 3")
        A("s_lshl_b32 s29, s29, 10")
        A(f"v_add_u32 v{4+i}, s29, v2")
    A("v_lshrrev_b32 v8, 4, v0")
    A("v_and_b32 v9, 15, v0")
    A("v_lshlrev_b32 v10, 4, v9")
    A("v_lshl_add_u32 v10, v8, 9, v10")
    A("v_lshlrev_b32 v11, 4, v9")
    A("v_lshrrev_b32 v12, 5, v0")
    A("v_lshl_add_u32 v11, v12, 9, v11")
    A("v_and_b32 v12, 1, v8")
    A("v_lshl_add_u32 v11, v12, 3, v11")
    A("v_add_u32 v11, 4096, v11")
    A("s_lshl_b32 s32, s26, 1")
    A("s_lshr_b32 s33, s3, 1")
    A("s_add_u32 s32, s32, s33")
    A("s_mul_i32 s32, s32, 40960")
    A("s_mul_i32 s33, s27, 5120")
    A("s_add_u32 s32, s32, s33")
    A("s_and_b32 s33, s3, 1")
    A("s_lshl_b32 s33, s33, 8")
    A("s_add_u32 s32, s32, s33")
    A("s_waitcnt lgkmcnt(0)")
    A.srd(8, 4, 5, SZ_W2, WS_W2)
    A.srd(12, 4, 5, SZ_HF, WS_HF)
    A.srd(16, 4, 5, SZ_XF, WS_XF)
    if final:
        A.srd(20, 6, 7, SZ_SD)
    else:
        A.srd(20, 4, 5, SZ_ST, WS_ST)
    XRES = 16
    A(f"buffer_load_dwordx4 {v(XRES,4)}, v10, s[16:19], s32 offen")
    A(f"buffer_load_dwordx4 {v(XRES+4,4)}, v10, s[16:19], s32 offen offset:2048")
    A(f"buffer_load_dwordx2 {v(XRES+8,2)}, v11, s[16:19], s32 offen")
    ACC = 32

    def step_ops(i):
        b = 36 * (i % 7)
        ops = []
        pre = ""
        if i == 13:
            pre = "s_cmp_ge_u32 s3, 2\ns_cselect_b32 s10, 0, s10\ns_cselect_b32 s14, 0, s14\n"
        ops.append(pre + f"buffer_load_dwordx4 {a(b,4)}, v2, s[8:11], s31 offen")
        for r in range(4):
            ops.append(f"buffer_load_dwordx4 {a(b+20+4*r,4)}, v{4+r}, s[12:15], s30 offen")
        for t in range(1, 4):
            ops.append(f"buffer_load_dwordx4 {a(b+4*t,4)}, v2, s[8:11], s31 offen offset:{1024*t}")
        ops.append(f"buffer_load_dwordx4 {a(b+16,4)}, v3, s[8:11], s31 offen\ns_add_u32 s30, s30, 4096\ns_add_u32 s31, s31, 5120")
        return ops
    for i in range(6):
        for op in step_ops(i):
            A(op)
    for i in range(14):
        b = 36 * (i % 7)
        later = min(5, 13 - i)
        A(f"s_waitcnt vmcnt({9*later})")
        pending = step_ops(i + 6) if i + 6 < 14 else []
        n = 0
        for t in range(5):
            for r in range(4):
                c = ACC + 20 * r + 4 * t
                src = "0" if i == 0 else v(c, 4)
                A(f"v_mfma_f32_16x16x32_bf16 {v(c,4)}, {a(b+4*t,4)}, {a(b+20+4*r,4)}, {src}")
                n += 1
                if pending and n % 2 == 0:
                    A(pending.pop(0))
        assert not pending
    for i in range(1, 4):
        A(f"s_add_u32 s29, s3, {i}")
        A("s_and_b32 s29, s29, 3")
        A("s_mul_i32 s29, s29, 15360")
        A(f"s_add_u32 s29, s29, {(i-1)*5120}")
        A(f"v_add_u32 v{4+i}, s29, v2")
    A("s_mul_i32 s29, s3, 15360")
    A("v_add_u32 v4, s29, v2")
    A("s_nop 2")
    for i in range(1, 4):
        for t in range(5):
            A(f"ds_write_b128 v{4+i}, {v(ACC+20*i+4*t,4)} offset:{1024*t}")
    A("s_waitcnt lgkmcnt(0)")
    A("s_barrier")
    for i in range(3):
        for t in range(5):
            A(f"ds_read_b128 {v(ACC+20*(i+1)+4*t,4)}, v4 offset:{5120*i+1024*t}")
    XU = 112
    for j in range(10):
        unpack(A, XU + 2 * j, XU + 2 * j + 1, XRES + j)
    for i in range(3):
        A(f"s_waitcnt lgkmcnt({10-5*i})")
        for j in range(10):
            A(f"v_pk_add_f32 {v(ACC+2*j,2)}, {v(ACC+2*j,2)}, {v(ACC+20*(i+1)+2*j,2)}")
    for j in range(10):
        A(f"v_cvt_pk_bf16_f32 v{ACC+20+j}, v{ACC+2*j}, v{ACC+2*j+1}")
    for j in range(10):
        unpack(A, ACC + 2 * j, ACC + 2 * j + 1, ACC + 20 + j)
        A(f"v_pk_add_f32 {v(ACC+2*j,2)}, {v(ACC+2*j,2)}, {v(XU+2*j,2)}")
        A(f"v_cvt_pk_bf16_f32 v{XRES+j}, v{ACC+2*j}, v{ACC+2*j+1}")
    if final:
        A("s_lshl_b32 s33, s26, 6")
        A("s_lshl_b32 s34, s3, 4")
        A("s_add_u32 s33, s33, s34")
        A("s_mul_i32 s33, s33, 1280")
        A("s_mul_i32 s34, s27, 160")
        A("s_add_u32 s33, s33, s34")
        A("v_mul_u32_u24 v10, 1280, v9")
        A("v_lshl_add_u32 v11, v8, 3, v10")
        A("v_lshl_add_u32 v10, v8, 4, v10")
        A(f"buffer_store_dwordx4 {v(XRES,4)}, v10, s[20:23], s33 offen")
        A(f"buffer_store_dwordx4 {v(XRES+4,4)}, v10, s[20:23], s33 offen offset:64")
        A(f"buffer_store_dwordx2 {v(XRES+8,2)}, v11, s[20:23], s33 offen offset:128")
    else:
        A(f"buffer_store_dwordx4 {v(XRES,4)}, v10, s[16:19], s32 offen")
        A(f"buffer_store_dwordx4 {v(XRES+4,4)}, v10, s[16:19], s32 offen offset:2048")
        A(f"buffer_store_dwordx2 {v(XRES+8,2)}, v11, s[16:19], s32 offen")
        A("v_mov_b32 v12, 0\nv_mov_b32 v13, 0\nv_mov_b32 v14, 0x3f803f80")
        for j in range(10):
            A(f"v_dot2c_f32_bf16 v12, v{XRES+j}, v14")
            A(f"v_dot2c_f32_bf16 v13, v{XRES+j}, v{XRES+j}")
        A("s_nop 2")
        for w in (16, 32):
            swap_add(A, 12, 15, w)
            swap_add(A, 13, 15, w)
        A("s_lshl_b32 s33, s26, 6")
        A("s_lshl_b32 s34, s3, 4")
        A("s_add_u32 s33, s33, s34")
        A("s_lshl_b32 s33, s33, 6")
        A("s_lshl_b32 s34, s27, 3")
        A("s_add_u32 s33, s33, s34")
        A("v_lshlrev_b32 v15, 6, v9")
        A("s_mov_b64 exec, 0xffff")
        A("buffer_store_dwordx2 v[12:13], v15, s[20:23], s33 offen")
    A(f"{Lend}:")
    A("s_endpgm")
    A.end_kernel(name, 132 + 252, 48, 132)


def k_mid(A):
    name = "mid_kernel"
    A.begin_kernel(name)
    Lend = A.label("mid_end")
    A("s_cmp_ge_u32 s2, 320")
    A(f"s_cbranch_scc1 {Lend}")
    A("s_load_dwordx2 s[4:5], s[0:1], 96")
    lane_wave(A)
    A("s_lshl_b32 s6, s2, 2")
    A("s_add_u32 s6, s6, s3")
    A("s_lshl_b32 s7, s6, 11")
    A("s_mul_i32 s24, s2, 205")
    A("s_lshr_b32 s24, s24, 10")
    A("s_lshl_b32 s24, s24, 11")
    A("v_lshlrev_b32 v2, 4, v0")
    A("v_and_b32 v3, 31, v0")
    A("v_lshlrev_b32 v3, 6, v3")
    A("s_waitcnt lgkmcnt(0)")
    A.srd(8, 4, 5, SZ_XF, WS_XF)
    A.srd(12, 4, 5, SZ_YF, WS_YF)
    A.srd(16, 4, 5, SZ_ST, WS_ST)
    for i in range(4):
        A(f"buffer_load_dwordx4 {v(8+4*i,4)}, v3, s[16:19], s24 offen offset:{16*i}")
    for i in range(2):
        A(f"buffer_load_dwordx4 {v(24+4*i,4)}, v2, s[8:11], s7 offen offset:{1024*i}")
        A(f"buffer_load_dwordx4 {v(32+4*i,4)}, v2, s[12:15], s7 offen offset:{1024*i}")
    A("s_waitcnt vmcnt(4)")
    for i in range(1, 8):
        A(f"v_pk_add_f32 v[8:9], v[8:9], {v(8+2*i,2)}")
    ln_stats(A, 8, 9, 10, 12, 14)
    A("v_mov_b32 v11, v10")
    A("v_mov_b32 v13, v12")
    for i in range(2):
        A(f"s_waitcnt vmcnt({2-i})")
        for j in range(4):
            unpack(A, 40, 41, 24 + 4 * i + j)
            unpack(A, 42, 43, 32 + 4 * i + j)
            A("v_pk_add_f32 v[44:45], v[40:41], v[10:11] neg_lo:[0,1] neg_hi:[0,1]")
            A("v_pk_mul_f32 v[44:45], v[44:45], v[12:13]")
            A("v_pk_fma_f32 v[44:45], v[44:45], v[42:43], v[40:41]")
            A(f"v_cvt_pk_bf16_f32 v{24+4*i+j}, v44, v45")
        A(f"buffer_store_dwordx4 {v(24+4*i,4)}, v2, s[8:11], s7 offen offset:{1024*i}")
    A(f"{Lend}:")
    A("s_endpgm")
    A.end_kernel(name, 48, 32, 48)


def main():
    A = Asm()
    k_prep(A)
    k_conv(A)
    k_g1(A)
    k_g2(A, False)
    k_mid(A)
    k_g2(A, True)
    g1 = "; @launch kernel=g1_kernel grid=(256,1,1) block=(256,1,1) lds=143360"
    A.launches += [g1,
                   "; @launch kernel=g2a_kernel grid=(256,1,1) block=(256,1,1) lds=61440",
                   "; @launch kernel=mid_kernel grid=(320,1,1) block=(256,1,1) lds=0",
                   g1,
                   "; @launch kernel=g2b_kernel grid=(256,1,1) block=(256,1,1) lds=61440"]
    hdr = "; generated by gen/gen.py - H3 long conv (Toeplitz MFMA) + bilinear GLU, two layers"
    out = sys.argv[1] if len(sys.argv) > 1 else f"cdna_kernels/{NAME}.s"
    open(out, "w").write(A.text(hdr))


if __name__ == "__main__":
    main()
```

```python
class Asm:
    def __init__(self):
        self.lines = []
        self.launches = []
        self.kernels = []
        self.uid = 0
        self.hook = None
        self.hook_n = 0
        self.cnt = 0
        self.masked = False
        self.nt_srds = ()

    def __call__(self, s):
        for ln in s.split("\n"):
            ln = ln.strip()
            if not ln:
                continue
            if ln.endswith(":") or ln.startswith("."):
                self.lines.append(ln)
            else:
                if ln.startswith("buffer_load") and any(x in ln for x in self.nt_srds) and " nt" not in ln:
                    ln = ln[:-4] + " nt lds" if ln.endswith(" lds") else ln + " nt"
                self.lines.append("    " + ln)
                self.cnt += 1
                if ln.startswith("s_mov_b64 exec,") or ln.startswith("s_mov_b32 exec_hi,"):
                    self.masked = not ln.endswith(" -1")
        if self.hook and self.cnt >= self.hook_n and not self.masked:
            h = self.hook
            self.hook = None
            h()
            self.cnt = 0
            self.hook = h

    def set_hook(self, fn, n=0):
        self.hook = fn; self.hook_n = n; self.cnt = 0

    def c(self, s):
        self.lines.append("    ; " + s)

    def label(self, base):
        self.uid += 1
        return f"L_{base}_{self.uid}"

    def begin_kernel(self, name):
        self(f".globl {name}")
        self(".p2align 8")
        self(f".type {name},@function")
        self(f"{name}:")

    def end_kernel(self, name, vgpr, sgpr, accum):
        self.kernels.append((name, vgpr, sgpr, accum))

    def srd(self, d, base_lo, base_hi, nbytes, off=0):
        if off:
            self(f"s_add_u32 s{d}, s{base_lo}, {off:#x}")
            self(f"s_addc_u32 s{d+1}, s{base_hi}, 0")
        else:
            self(f"s_mov_b32 s{d}, s{base_lo}")
            self(f"s_mov_b32 s{d+1}, s{base_hi}")
        self(f"s_mov_b32 s{d+2}, {nbytes:#x}")
        self(f"s_mov_b32 s{d+3}, 0x20000")

    def text(self, header):
        out = [header]
        for l in self.launches:
            out.append(l)
        out.append('.amdgcn_target "amdgcn-amd-amdhsa--gfx950"')
        out.append(".text")
        out += self.lines
        out.append('.section .rodata,"a"')
        for name, vgpr, sgpr, accum in self.kernels:
            out.append(".p2align 6")
            out.append(f".amdhsa_kernel {name}")
            out.append(f"  .amdhsa_next_free_vgpr {vgpr}")
            out.append(f"  .amdhsa_next_free_sgpr {sgpr}")
            out.append(f"  .amdhsa_accum_offset {accum}")
            out.append("  .amdhsa_group_segment_fixed_size 0")
            out.append("  .amdhsa_kernarg_size 104")
            out.append("  .amdhsa_user_sgpr_count 2")
            out.append("  .amdhsa_user_sgpr_kernarg_segment_ptr 1")
            out.append("  .amdhsa_system_sgpr_workgroup_id_x 1")
            out.append("  .amdhsa_float_denorm_mode_32 3")
            out.append(".end_amdhsa_kernel")
        return "\n".join(out) + "\n"


def v(i, n=1):
    return f"v{i}" if n == 1 else f"v[{i}:{i+n-1}]"


def a(i, n=1):
    return f"a{i}" if n == 1 else f"a[{i}:{i+n-1}]"


def s(i, n=1):
    return f"s{i}" if n == 1 else f"s[{i}:{i+n-1}]"
```

```python
from asmlib import v, a, s

import os
G1MAP = int(os.environ.get("G1MAP", "2"))
W2PRE = int(os.environ.get("W2PRE", "6"))
R = 10
W2V, RING, ACC, AF, XS, YS = 32, 56, 136, 192, 220, 232
RED = 143360
RB_XN = 40960
RB_HF = 114688


def k_ffn(A, G):
    unpack, ln_stats, swap_add, round_bf16 = G.unpack, G.ln_stats, G.swap_add, G.round_bf16
    name = "ffn_kernel"
    A.launches.append(f"; @launch kernel={name} grid=(256,1,1) block=(256,1,1) lds=163840")
    A.begin_kernel(name)
    ST = G.Stamps(A, 255)
    Lend = A.label("ffn_end"); Ldma = A.label("ffn_dma"); Lw2 = A.label("ffn_w2")
    A("s_cmp_ge_u32 s2, 256")
    A(f"s_cbranch_scc1 {Lend}")
    A("s_load_dwordx2 s[4:5], s[0:1], 96")
    A("s_load_dwordx2 s[6:7], s[0:1], 0")
    A("s_load_dwordx2 s[8:9], s[0:1], 80")
    ST.init()
    ST.sync()
    G.lane_wave(A)
    A("s_and_b32 s24, s2, 7")
    A("s_lshr_b32 s58, s2, 3")
    A("s_and_b32 s26, s58, 7")
    A("s_lshr_b32 s27, s58, 3")
    if G1MAP == 0:
        A("s_mov_b32 s59, s24")
        A("s_mov_b32 s25, s58")
    else:
        m = G1MAP
        A(f"s_lshr_b32 s59, s24, {m}")
        A(f"s_lshl_b32 s59, s59, {m}")
        A(f"s_lshr_b32 s51, s58, {5-m}")
        A("s_add_u32 s59, s59, s51")
        A(f"s_and_b32 s25, s24, {(1<<m)-1}")
        A(f"s_lshl_b32 s25, s25, {5-m}")
        A(f"s_and_b32 s51, s58, {(32>>m)-1}")
        A("s_add_u32 s25, s25, s51")
    A("s_lshr_b32 s28, s3, 1")
    A("s_and_b32 s29, s3, 1")
    A("s_lshl_b32 s51, s59, 3")
    A("s_add_u32 s52, s51, s3")
    A("s_lshl_b32 s51, s24, 3")
    A("s_add_u32 s53, s51, s27")
    A(f"s_mul_i32 s30, s52, {RB_XN}")
    A(f"s_mul_i32 s32, s53, {RB_HF}")
    A(f"s_mul_i32 s51, s3, {14*2048}")
    A("s_add_u32 s32, s32, s51")
    A(f"s_mul_i32 s34, s52, {RB_HF}")
    A(f"s_mul_i32 s36, s53, {RB_XN}")
    A("s_lshl_b32 s51, s29, 10")
    A("s_add_u32 s36, s36, s51")
    A("s_lshl_b32 s38, s53, 1")
    A("s_add_u32 s38, s38, s29")
    A("s_lshl_b32 s48, s38, 13")
    A("s_lshl_b32 s51, s26, 1")
    A("s_add_u32 s51, s51, s28")
    A("s_lshl_b32 s51, s51, 9")
    A("s_add_u32 s49, s48, s51")
    A(f"s_mul_i32 s38, s38, {16*1280}")
    A("s_mul_i32 s51, s26, 160")
    A("s_add_u32 s38, s38, s51")
    F = G.FSH
    A(f"s_lshl_b32 s40, s52, {5+F}")
    A(f"s_lshl_b32 s42, s53, {5+F}")
    A(f"s_lshl_b32 s51, s26, {2+F}")
    A("s_add_u32 s42, s42, s51")
    A(f"s_lshl_b32 s51, s3, {F}")
    A("s_add_u32 s43, s42, s51")
    A(f"s_lshl_b32 s44, s53, {5+F}")
    A(f"s_lshl_b32 s51, s3, {3+F}")
    A("s_add_u32 s44, s44, s51")
    A(f"s_lshl_b32 s46, s52, {5+F}")
    A(f"s_lshl_b32 s51, s25, {F}")
    A("s_add_u32 s46, s46, s51")
    A("s_mov_b32 s50, 100000")
    A("s_cmp_eq_u32 s28, 0")
    A("s_cselect_b32 s56, -1, 0")
    A("s_cselect_b32 s57, 0, -1")
    A("v_lshlrev_b32 v2, 4, v0")
    A("v_add_u32 v3, 0x10000, v2")
    A("v_add_u32 v4, 0x20000, v2")
    A("s_lshl_b32 s51, s29, 10")
    A("v_add_u32 v5, s51, v2")
    A("v_xor_b32 v6, 1024, v5")
    A("v_lshrrev_b32 v21, 4, v0")
    A("v_and_b32 v22, 15, v0")
    A("v_lshlrev_b32 v23, 4, v22")

    def piece_off(dst, pi):
        A(f"v_lshrrev_b32 v24, 2, v{pi}")
        A(f"v_lshl_add_u32 v{dst}, v24, 11, v23")
        A(f"v_and_b32 v24, 3, v{pi}")
        A(f"v_lshl_add_u32 v{dst}, v24, 8, v{dst}")
    A("s_mul_i32 s51, s25, 7")
    A("v_add_u32 v25, s51, v21")
    piece_off(7, 25)
    A("s_mul_i32 s51, s26, 10")
    A("s_lshl_b32 s54, s28, 2")
    A("s_add_u32 s54, s54, s51")
    A("v_add_u32 v25, s54, v21")
    piece_off(8, 25)
    A("s_add_u32 s51, s51, 8")
    A("v_lshrrev_b32 v25, 1, v21")
    A("v_add_u32 v25, s51, v25")
    piece_off(9, 25)
    A("v_and_b32 v24, 1, v21")
    A("v_lshl_add_u32 v9, v24, 3, v9")
    A("v_mul_u32_u24 v24, 1280, v22")
    A("v_lshl_add_u32 v10, v21, 4, v24")
    A("s_lshl_b32 s51, s28, 6")
    A("v_add_u32 v10, s51, v10")
    A("v_lshl_add_u32 v11, v21, 3, v24")
    A("v_add_u32 v11, 128, v11")
    A("v_and_b32 v12, 31, v0")
    A(f"v_lshlrev_b32 v12, {F}, v12")
    A("v_and_b32 v13, 7, v0")
    A(f"v_lshlrev_b32 v13, {F}, v13")
    A("v_lshlrev_b32 v14, 5, v22")
    A("v_lshl_add_u32 v14, v21, 3, v14")
    for reg, x in ((15, 0), (16, 1), (17, 2)):
        A(f"s_xor_b32 s51, s3, {x}")
        A("s_mul_i32 s51, s51, 5120")
        A(f"s_add_u32 s51, s51, {RED}")
        A(f"v_add_u32 v{reg}, s51, v2")
    A("v_mov_b32 v19, 1")
    A("v_mov_b32 v20, 0")
    A("s_waitcnt lgkmcnt(0)")
    A.srd(12, 4, 5, G.WS_END)
    A.srd(16, 6, 7, G.SZ_SD)
    A.srd(20, 8, 9, G.SZ_SD)
    WS = "s[12:15]"
    A("s_cmp_ge_u32 s3, 2")
    A(f"s_cbranch_scc1 {Ldma}")

    T, TY, X, Y = 56, 76, 96, 136
    A("v_and_b32 v24, 3, v0")
    A("v_lshrrev_b32 v25, 2, v0")
    A("v_mul_u32_u24 v26, 1280, v24")
    A("v_lshl_add_u32 v26, v25, 4, v26")
    A("s_lshl_b32 s51, s24, 8")
    A("s_lshl_b32 s54, s3, 7")
    A("s_add_u32 s51, s51, s54")
    A("s_lshl_b32 s54, s58, 2")
    A("s_add_u32 s51, s51, s54")
    A("s_mul_i32 s51, s51, 1280")
    A("v_lshrrev_b32 v27, 2, v25")
    A("v_lshlrev_b32 v27, 11, v27")
    A("v_and_b32 v28, 3, v25")
    A("v_lshl_add_u32 v27, v28, 8, v27")
    A("v_lshl_add_u32 v27, v24, 4, v27")
    A("s_lshl_b32 s54, s3, 2")
    A("s_add_u32 s54, s54, s53")
    A(f"s_mul_i32 s54, s54, {RB_XN}")
    A("s_bfe_u32 s55, s58, 0x10002")
    A("s_lshl_b32 s55, s55, 10")
    A("s_add_u32 s54, s54, s55")
    A("s_and_b32 s55, s58, 3")
    A("s_lshl_b32 s55, s55, 6")
    A("s_add_u32 s54, s54, s55")
    for i in range(5):
        A(f"buffer_load_dwordx4 {v(T+4*i,4)}, v26, s[16:19], s51 offen offset:{256*i}")
    for i in range(5):
        A(f"s_add_u32 s55, s54, {G.WS_YF + 8192*i:#x}")
        A(f"buffer_load_dwordx4 {v(TY+4*i,4)}, v27, {WS}, s55 offen")
    S = 176

    def row_stats():
        A(f"v_add_f32 v{S}, v{S}, v{S+1}")
        A(f"v_add_f32 v{S+2}, v{S+2}, v{S+3}")
        A("s_nop 1")
        for ror in (4, 8):
            A(f"v_add_f32_dpp v{S}, v{S}, v{S} row_ror:{ror} row_mask:0xf bank_mask:0xf")
            A(f"v_add_f32_dpp v{S+2}, v{S+2}, v{S+2} row_ror:{ror} row_mask:0xf bank_mask:0xf")
            A("s_nop 1")
        for w in (16, 32):
            swap_add(A, S, S + 1, w)
            swap_add(A, S + 2, S + 3, w)
        ln_stats(A, S, S + 2, S + 4, S + 6, S + 1)
        A(f"v_mov_b32 v{S+5}, v{S+4}")
        A(f"v_mov_b32 v{S+7}, v{S+6}")
    for j in range(4):
        A(f"v_mov_b32 v{S+j}, 0")
    for i in range(5):
        A(f"s_waitcnt vmcnt({9-i})")
        for j in range(4):
            x = X + 8 * i + 2 * j
            unpack(A, x, x + 1, T + 4 * i + j)
            A(f"v_pk_add_f32 {v(S,2)}, {v(S,2)}, {v(x,2)}")
            A(f"v_pk_fma_f32 {v(S+2,2)}, {v(x,2)}, {v(x,2)}, {v(S+2,2)}")
    row_stats()
    for j in range(4):
        A(f"v_mov_b32 v{S+8+j}, 0")
    for i in range(5):
        A(f"s_waitcnt vmcnt(4)")
        for j in range(4):
            x = X + 8 * i + 2 * j; y = Y + 8 * i + 2 * j
            unpack(A, y, y + 1, TY + 4 * i + j)
            A(f"v_pk_add_f32 v[28:29], {v(x,2)}, {v(S+4,2)} neg_lo:[0,1] neg_hi:[0,1]")
            A(f"v_pk_mul_f32 v[28:29], v[28:29], {v(S+6,2)}")
            A(f"v_pk_fma_f32 v[28:29], v[28:29], {v(y,2)}, {v(x,2)}")
            A(f"v_cvt_pk_bf16_f32 v{T+4*i+j}, v28, v29")
            unpack(A, x, x + 1, T + 4 * i + j)
            A(f"v_pk_add_f32 {v(S+8,2)}, {v(S+8,2)}, {v(x,2)}")
            A(f"v_pk_fma_f32 {v(S+10,2)}, {v(x,2)}, {v(x,2)}, {v(S+10,2)}")
        A(f"s_add_u32 s55, s54, {G.WS_X1 + 8192*i:#x}")
        A(f"buffer_store_dwordx4 {v(T+4*i,4)}, v27, {WS}, s55 offen sc1")
    for j in range(4):
        A(f"v_mov_b32 v{S+j}, v{S+8+j}")
    row_stats()
    for i in range(5):
        for j in range(4):
            x = X + 8 * i + 2 * j
            A(f"v_pk_add_f32 {v(x,2)}, {v(x,2)}, {v(S+4,2)} neg_lo:[0,1] neg_hi:[0,1]")
            A(f"v_pk_mul_f32 {v(x,2)}, {v(x,2)}, {v(S+6,2)}")
            A(f"v_cvt_pk_bf16_f32 v{TY+4*i+j}, v{x}, v{x+1}")
        A(f"s_add_u32 s55, s54, {G.WS_XN + 8192*i:#x}")
        A(f"buffer_store_dwordx4 {v(TY+4*i,4)}, v27, {WS}, s55 offen sc1")
    A(f"s_lshl_b32 s55, s3, {7+F}")
    A("s_add_u32 s55, s55, s42")
    A(f"s_add_u32 s55, s55, {G.WS_FX:#x}")
    A("s_waitcnt vmcnt(0)")
    A("s_mov_b64 exec, 15")
    A(f"buffer_store_dword v19, v12, {WS}, s55 offen sc1")
    A("s_mov_b64 exec, -1")
    A(f"s_branch {Lw2}")
    A(f"{Ldma}:")
    A("s_mul_i32 s51, s25, 143360")
    A("s_mul_i32 s54, s29, 71680")
    A("s_add_u32 s51, s51, s54")
    A(f"s_add_u32 s51, s51, {G.WS_W1:#x}")
    vm = G.VM(A)
    for i in range(18):
        A(f"s_add_u32 m0, s54, {4096*i}")
        A("s_nop 0")
        for j in range(4 if i < 17 else 2):
            vm.issue(f"buffer_load_dwordx4 v2, {WS}, s51 offen offset:{1024*j} lds")
        A("s_add_u32 s51, s51, 4096")
    A("s_waitcnt vmcnt(20)")
    A(f"{Lw2}:")
    ST(1)
    vm = G.VM(A); vm.n = 21

    def w2reg(n):
        return a(4 * n, 4) if n < 64 else v(W2V + 4 * (n - 64), 4)
    A("s_mul_i32 s60, s26, 56")
    A("s_mul_i32 s54, s3, 14")
    A("s_add_u32 s60, s60, s54")
    A("s_mul_i32 s60, s60, 5120")
    A(f"s_add_u32 s60, s60, {G.WS_W2:#x}")
    A("s_lshl_b32 s54, s28, 11")
    A("v_add_u32 v244, s54, v2")
    A("v_xor_b32 v245, 2048, v244")
    A("v_add_u32 v246, 4096, v2")

    def w2_load(n):
        i, sl = divmod(n, 5)
        vo = ("v244", "v244", "v245", "v245", "v246")[sl]
        off = (0, 1024, 0, 1024, 0)[sl]
        txt = f"buffer_load_dwordx4 {w2reg(n)}, {vo}, {WS}, s60 offen offset:{off}"
        if sl == 4:
            txt += "\ns_add_u32 s60, s60, 5120"
        return txt
    for st in range(2):
        for j in range(4, 6):
            A(f"v_mov_b32 v{YS+6*st+j}, 0")
        A(f"s_add_u32 s55, s36, {G.WS_YF + st*4*RB_XN:#x}")
        vm.issue(f"buffer_load_dwordx4 {v(YS+6*st,4)}, v8, {WS}, s55 offen")
        A("s_mov_b64 exec, s[56:57]")
        vm.issue(f"buffer_load_dwordx2 {v(YS+6*st+4,2)}, v9, {WS}, s55 offen")
        A("s_mov_b64 exec, -1")
    for n in range(5 * W2PRE):
        vm.issue(w2_load(n))
    w2_rest = list(range(5 * W2PRE, 70))
    vm.wait_all()
    A("s_barrier")
    ST(2)

    def flag_load(kind, L, st):
        base = (G.WS_FX if kind == "x" else G.WS_FH) + L * (2048 << F) + st * (128 << F)
        sreg, vreg = (40, 12) if kind == "x" else (44, 13)
        return f"s_add_u32 s55, s{sreg}, {base:#x}\nbuffer_load_dword v18, v{vreg}, {WS}, s55 offen sc1"

    def flag_store(kind, L, st):
        base = (G.WS_FX if kind == "x" else G.WS_FH) + L * (2048 << F) + st * (128 << F)
        sreg = 43 if kind == "x" else 46
        return (f"s_add_u32 s55, s{sreg}, {base:#x}\ns_mov_b64 exec, 1\n"
                f"buffer_store_dword v19, v20, {WS}, s55 offen sc1\ns_mov_b64 exec, -1")

    def spin(test, reload):
        Lc = A.label("chk"); Lo = A.label("ok")
        saved = A.hook
        A.hook = None
        A(f"{Lc}:")
        test()
        A(f"s_cbranch_vccz {Lo}")
        A("s_cmp_eq_u32 s50, 0")
        A(f"s_cbranch_scc1 {Lo}")
        A("s_sub_u32 s50, s50, 1")
        A("s_sleep 1")
        A(reload)
        A("s_waitcnt vmcnt(0)")
        A(f"s_branch {Lc}")
        A(f"{Lo}:")
        ST.val(44 + spin.n, 50)
        spin.n += 1
        A.hook = saved
    spin.n = 0

    def check_flag(seq, kind, L, st):
        vm.wait(seq)
        spin(lambda: A("v_cmp_eq_u32 vcc, 0, v18"), flag_load(kind, L, st))

    def rdA(ks, t):
        off = ks * 7168 + t * 1024
        A(f"ds_read_b128 {v(AF+4*t,4)}, v{2+(off>>16)} offset:{off & 0xffff}")

    SU = 176

    def sums_load_text(st):
        out = []
        for hi in range(2):
            out.append(f"s_add_u32 s55, s48, {G.WS_SUM + st*8*8192 + hi*4096:#x}")
            for p in range(8):
                out.append(f"buffer_load_dwordx2 {v(SU+2*(8*hi+p),2)}, v14, {WS}, s55 offen offset:{512*p} sc1")
        return out

    def issue_sums(st):
        last = None
        for t in sums_load_text(st):
            if t.startswith("s_add"):
                A(t)
            else:
                last = vm.issue(t)
        return last

    def phase_E(st, seq):
        vm.wait(seq)
        U = 208

        def test():
            A(f"v_pk_add_f32 {v(U,2)}, {v(SU,2)}, {v(SU+2,2)}")
            A(f"v_pk_add_f32 {v(U+2,2)}, {v(SU+4,2)}, {v(SU+6,2)}")
            for p in range(4, 16, 2):
                A(f"v_pk_add_f32 {v(U,2)}, {v(U,2)}, {v(SU+2*p,2)}")
                A(f"v_pk_add_f32 {v(U+2,2)}, {v(U+2,2)}, {v(SU+2*p+2,2)}")
            A(f"v_pk_add_f32 {v(U,2)}, {v(U,2)}, {v(U+2,2)}")
            A(f"v_cmp_u_f32 vcc, v{U}, v{U+1}")
        ST(34 + 2 * st)
        spin(test, "\n".join(sums_load_text(st)))
        ST(35 + 2 * st)
        Z = SU
        for h in range(2):
            A(f"v_mov_b32 v{Z+4*h}, v{U+h}")
            A(f"v_mov_b32 v{Z+4*h+2}, v{U+h}")
        A("s_nop 1")
        for h in range(2):
            A(f"v_permlane16_swap_b32 v{Z+4*h}, v{Z+4*h+2}")
        for h in range(4):
            A(f"v_mov_b32 v{Z+2*h+1}, v{Z+2*h}")
        A("s_nop 1")
        for h in range(4):
            A(f"v_permlane32_swap_b32 v{Z+2*h}, v{Z+2*h+1}")
        S1, S2, SA, SB, SC, SD, SE, SF = range(Z, Z + 8)
        M2, R2, M3, R3, T0, T1, T2 = Z + 8, Z + 10, Z + 12, Z + 14, Z + 16, Z + 17, Z + 18
        A(f"v_mov_b32 v{T0}, v{S1}")
        A(f"v_mov_b32 v{T1}, v{S2}")
        ln_stats(A, T0, T1, M2, R2, T2)
        A(f"v_fma_f32 v{T0}, -v{M2}, v{SE}, v{SA}")
        A(f"v_fma_f32 v{S1}, v{R2}, v{T0}, v{S1}")
        A(f"v_fma_f32 v{T0}, -v{M2}, v{SA}, v{SB}")
        A(f"v_add_f32 v{T0}, v{T0}, v{T0}")
        A(f"v_mul_f32 v{T1}, v{M2}, v{SF}")
        A(f"v_fma_f32 v{T1}, -2.0, v{SD}, v{T1}")
        A(f"v_fma_f32 v{T1}, v{M2}, v{T1}, v{SC}")
        A(f"v_fma_f32 v{T0}, v{R2}, v{T1}, v{T0}")
        A(f"v_fma_f32 v{S2}, v{R2}, v{T0}, v{S2}")
        ln_stats(A, S1, S2, M3, R3, T2)
        for r in (M2, R2, M3, R3):
            A(f"v_mov_b32 v{r+1}, v{r}")
        XN = Z + 20
        P = Z + 26
        for j in range(6):
            x = P + 6 * (j & 1); y = x + 2; d = x + 4
            unpack(A, x, x + 1, XS + 6 * st + j)
            unpack(A, y, y + 1, YS + 6 * st + j)
            A(f"v_pk_add_f32 {v(d,2)}, {v(x,2)}, {v(M2,2)} neg_lo:[0,1] neg_hi:[0,1]")
            A(f"v_pk_mul_f32 {v(d,2)}, {v(d,2)}, {v(R2,2)}")
            A(f"v_pk_fma_f32 {v(d,2)}, {v(d,2)}, {v(y,2)}, {v(x,2)}")
            A(f"v_cvt_pk_bf16_f32 v{XS+6*st+j}, v{d}, v{d+1}")
            unpack(A, x, x + 1, XS + 6 * st + j)
            A(f"v_pk_add_f32 {v(x,2)}, {v(x,2)}, {v(M3,2)} neg_lo:[0,1] neg_hi:[0,1]")
            A(f"v_pk_mul_f32 {v(x,2)}, {v(x,2)}, {v(R3,2)}")
            A(f"v_cvt_pk_bf16_f32 v{XN+j}, v{x}, v{x+1}")
        A(f"s_add_u32 s55, s36, {G.WS_XN + G.SZ_SD + st*4*RB_XN:#x}")
        vm.issue(f"buffer_store_dwordx4 {v(XN,4)}, v8, {WS}, s55 offen sc1")
        A("s_mov_b64 exec, s[56:57]")
        q = vm.issue(f"buffer_store_dwordx2 {v(XN+4,2)}, v9, {WS}, s55 offen sc1")
        A("s_mov_b64 exec, -1")
        return q

    def g1_epilogue(L, st):
        A("s_nop 4")
        A(f"s_add_u32 s54, s34, {G.WS_HF + L*G.SZ_HF + st*4*RB_HF:#x}")
        last = None
        for t in range(7):
            for rb in range(2):
                c = ACC + 8 * t + 4 * rb
                A(f"v_permlane32_swap_b32 v{c}, v{c+2}")
                A(f"v_permlane32_swap_b32 v{c+1}, v{c+3}")
            for rb in range(2):
                c = ACC + 8 * t + 4 * rb
                A(f"v_pk_mul_f32 {v(c,2)}, {v(c,2)}, {v(c+2,2)}")
            for rb in range(2):
                c = ACC + 8 * t + 4 * rb
                d = ACC + (0 if t < 4 else 32) + 4 * rb + (t & 3)
                A(f"v_cvt_pk_bf16_f32 v{d}, v{c}, v{c+1}")
            if t == 3:
                for rb in range(2):
                    vm.issue(f"buffer_store_dwordx4 {v(ACC+4*rb,4)}, v7, {WS}, s54 offen offset:{1024*rb} sc1")
        for rb in range(2):
            x = ACC + 32 + 4 * rb
            A(f"v_mov_b32 v{24+4*rb}, v{x+2}")
            A(f"v_mov_b32 v{25+4*rb}, v{x}")
        A("s_nop 0")
        for rb in range(2):
            x = ACC + 32 + 4 * rb
            A(f"v_permlane16_swap_b32 v{24+4*rb}, v{x+3}")
            A(f"v_permlane16_swap_b32 v{25+4*rb}, v{26+4*rb}")
        A("s_nop 0")
        for rb in range(2):
            x = ACC + 32 + 4 * rb
            A(f"v_mov_b32_dpp v{26+4*rb}, v{x+1} quad_perm:[0,1,2,3] row_mask:0x8 bank_mask:0xf")
        A("s_nop 1")
        for rb in range(2):
            x = ACC + 32 + 4 * rb
            A(f"v_permlane32_swap_b32 v{26+4*rb}, v{x+3}")
        A("s_mov_b32 exec_hi, 0xffff")
        for rb in range(2):
            last = vm.issue(f"buffer_store_dwordx4 {v(ACC+32+4*rb,4)}, v7, {WS}, s54 offen offset:{2048+1024*rb} sc1")
        A("s_mov_b32 exec_hi, -1")
        return last

    def g2_tail(L, st, mid=None):
        A("s_barrier")
        A("s_nop 5")
        for t in range(5):
            A(f"ds_write_b128 v16, {v(ACC+20+4*t,4)} offset:{1024*t}")
        A("s_waitcnt lgkmcnt(0)")
        A("s_barrier")
        for t in (2, 3, 4, 0, 1):
            A(f"ds_read_b128 {v(ACC+20+4*t,4)}, v15 offset:{1024*t}")
        for n, t in enumerate((2, 3, 4, 0, 1)):
            A(f"s_waitcnt lgkmcnt({4-n})" if n < 3 else f"s_waitcnt lgkmcnt({3+4-n})")
            for j in range(2):
                A(f"v_pk_add_f32 {v(ACC+4*t+2*j,2)}, {v(ACC+4*t+2*j,2)}, {v(ACC+20+4*t+2*j,2)}")
            if n == 2:
                for tt in (2, 3, 4):
                    A(f"ds_write_b128 v15, {v(ACC+4*tt,4)} offset:{1024*tt}")
        A("s_waitcnt lgkmcnt(0)")
        A("s_barrier")
        for t in (2, 3, 4):
            A(f"ds_read_b128 {v(ACC+20+4*t,4)}, v17 offset:{1024*t}")
        if mid: mid()
        XU = 176
        for j in range(6):
            unpack(A, XU + 2 * j, XU + 2 * j + 1, XS + 6 * st + j)
        O = [ACC, ACC + 2, ACC + 4, ACC + 6, ACC + 16, ACC + 18]
        src = [ACC + 28, ACC + 30, ACC + 32, ACC + 34, ACC + 36, ACC + 38]
        for j in range(6):
            if j % 2 == 0:
                A(f"s_waitcnt lgkmcnt({2-j//2})")
            A(f"v_pk_add_f32 {v(O[j],2)}, {v(O[j],2)}, {v(src[j],2)}")
        for j in range(6):
            A(f"v_cvt_pk_bf16_f32 v{ACC+20+j}, v{O[j]}, v{O[j]+1}")
        for j in range(6):
            unpack(A, O[j], O[j] + 1, ACC + 20 + j)
            A(f"v_pk_add_f32 {v(O[j],2)}, {v(O[j],2)}, {v(XU+2*j,2)}")
            A(f"v_cvt_pk_bf16_f32 v{XS+6*st+j}, v{O[j]}, v{O[j]+1}")
        if L == 1:
            A(f"s_add_u32 s55, s38, {st*128*1280}")
            vm.issue(f"buffer_store_dwordx4 {v(XS+6*st,4)}, v10, s[20:23], s55 offen")
            A("s_mov_b64 exec, s[56:57]")
            vm.issue(f"buffer_store_dwordx2 {v(XS+6*st+4,2)}, v11, s[20:23], s55 offen")
            A("s_mov_b64 exec, -1")
            return
        for j in (4, 5):
            A(f"v_cndmask_b32 v{XS+6*st+j}, 0, v{XS+6*st+j}, s[56:57]")
        Z = 188
        for j in range(6):
            x = 204 + 6 * (j & 1); y = x + 2; p = x + 4
            unpack(A, x, x + 1, XS + 6 * st + j)
            unpack(A, y, y + 1, YS + 6 * st + j)
            A(f"v_pk_mul_f32 {v(p,2)}, {v(x,2)}, {v(y,2)}")
            terms = [(x, None), (x, x), (p, None), (p, x), (p, p), (p, y), (y, None), (y, y)]
            for n, (u, w) in enumerate(terms):
                z = Z + 2 * n
                if j == 0:
                    if w is None:
                        A(f"v_mov_b32 v{z}, v{u}\nv_mov_b32 v{z+1}, v{u+1}")
                    else:
                        A(f"v_pk_mul_f32 {v(z,2)}, {v(u,2)}, {v(w,2)}")
                elif w is None:
                    A(f"v_pk_add_f32 {v(z,2)}, {v(z,2)}, {v(u,2)}")
                else:
                    A(f"v_pk_fma_f32 {v(z,2)}, {v(u,2)}, {v(w,2)}, {v(z,2)}")
        for n in range(8):
            A(f"v_add_f32 v{Z+2*n}, v{Z+2*n}, v{Z+2*n+1}")
        A("s_nop 1")
        for n in range(4):
            A(f"v_permlane32_swap_b32 v{Z+4*n}, v{Z+4*n+2}")
        for n in range(4):
            A(f"v_add_f32 v{Z+4*n}, v{Z+4*n}, v{Z+4*n+2}")
        A("s_nop 1")
        for n in range(2):
            A(f"v_permlane16_swap_b32 v{Z+8*n}, v{Z+8*n+4}")
        for n in range(2):
            A(f"v_add_f32 v{Z+n}, v{Z+8*n}, v{Z+8*n+4}")
        A(f"s_add_u32 s55, s49, {G.WS_SUM + st*8*8192:#x}")
        vm.issue(f"buffer_store_dwordx2 {v(Z,2)}, v14, {WS}, s55 offen sc1")

    PH = [("g1", 0, 20), ("g1", 1, 20), ("g2", 0, 14), ("g2", 1, 14)]
    PACE = int(os.environ.get("PACE", "12"))
    FILL0 = int(os.environ.get("FILL0", "4"))
    for L in range(2):
        stream = []
        for kind, st, n in PH:
            stream += [(kind, st, i) for i in range(n)]
        seqs = {}
        state = {"next": 0, "gate": 0, "cur": 0}
        Q = []
        phase_of = lambda n: 0 if n < 20 else 1 if n < 40 else 2 if n < 54 else 3

        def entry_ops(n):
            kind, st, i = stream[n]
            r = RING + 8 * (n % R)
            o = 2048 * (i & 1)
            if kind == "g1":
                base = G.WS_XN + L * G.SZ_SD + st * 4 * RB_XN + (i & ~1) * 2048
                pre = f"s_add_u32 s52, s30, {base:#x}" if not i & 1 else None
                return [(None, pre, f"buffer_load_dwordx4 {v(r,4)}, v2, {WS}, s52 offen offset:{o} sc1"),
                        (n, None, f"buffer_load_dwordx4 {v(r+4,4)}, v2, {WS}, s52 offen offset:{o+1024} sc1")]
            base = G.WS_HF + L * G.SZ_HF + st * 4 * RB_HF + (i & ~1) * 2048
            pre = f"s_add_u32 s52, s32, {base:#x}" if not i & 1 else None
            return [(None, pre, f"buffer_load_dwordx4 {v(r,4)}, v5, {WS}, s52 offen offset:{o} sc1"),
                    (n, None, f"buffer_load_dwordx4 {v(r+4,4)}, v6, {WS}, s52 offen offset:{o} sc1")]

        def refill():
            if Q: return
            n = state["next"]
            if n < len(stream) and n < state["cur"] + R and phase_of(n) < state["gate"]:
                Q.extend(entry_ops(n))
                state["next"] += 1

        def pre_slot():
            refill()
            if Q and Q[0][1]:
                A(Q[0][1]); Q[0] = (Q[0][0], None, Q[0][2])

        def slot():
            pre_slot()
            if Q:
                tag, _, text = Q.pop(0)
                q = vm.issue(text)
                if tag is not None: seqs[tag] = q
                return True
            return False

        def need(n):
            while n not in seqs:
                assert slot(), n
            vm.wait(seqs[n])

        def x1_load(st):
            A(f"s_add_u32 s55, s36, {G.WS_X1 + st*4*RB_XN:#x}")
            vm.issue(f"buffer_load_dwordx4 {v(XS+6*st,4)}, v8, {WS}, s55 offen sc1")
            vm.issue(f"buffer_load_dwordx2 {v(XS+6*st+4,2)}, v9, {WS}, s55 offen sc1")

        q = vm.issue(flag_load("x", L, 0))
        if L == 1:
            sq = issue_sums(1)
        check_flag(q, "x", L, 0)
        ST(3 + 16 * L)
        state["gate"] = 1
        for _ in range(2 * FILL0): slot()
        pend_flag = {}
        if L == 1:
            ST(32)
            A.set_hook(slot, PACE)
            q = phase_E(1, sq)
            A.set_hook(None)
            pend_flag[4] = (q, "x", 1, 1)
        for t in range(7):
            rdA(0, t)
        ST(4 + 16 * L)
        fl_at = {8: ("x", 1), 30: ("h", 0), 49: ("h", 1)}
        gate_at = {12: ("x", 1), 34: ("h", 0)}
        flq = None
        sumq = None
        for n, (kind, st, i) in enumerate(stream):
            state["cur"] = n
            if n in (20, 40, 54):
                ST({20: 6, 40: 8, 54: 10}[n] + 16 * L)
            if n in gate_at:
                check_flag(flq, gate_at[n][0], L, gate_at[n][1])
                state["gate"] += 1
                if L == 0 and n == 34: x1_load(0)
            if n in pend_flag:
                q, k_, L_, st_ = pend_flag.pop(n)
                vm.wait(q)
                vm.issue(flag_store(k_, L_, st_))
            if n in fl_at:
                flq = vm.issue(flag_load(fl_at[n][0], L, fl_at[n][1]))
            if L == 0 and n == 54 + 5:
                txt = sums_load_text(0)
                txt = [x.replace("s55", "s61") for x in txt]
                pre = None
                for x in txt:
                    if x.startswith("s_add"): pre = x
                    else:
                        Q.append((None, pre, x)); pre = None
                Q[-1] = ("sums", Q[-1][1], Q[-1][2])
            need(n)
            r = RING + 8 * (n % R)
            if kind == "g1":
                more = not (st == 1 and i == 19)
                if i == 0 and st == 0:
                    A("s_waitcnt lgkmcnt(6)")
                for t in range(7):
                    c = ACC + 8 * t
                    for rb in range(2):
                        srcc = "0" if i == 0 else v(c + 4 * rb, 4)
                        A(f"v_mfma_f32_16x16x32_bf16 {v(c+4*rb,4)}, {v(AF+4*t,4)}, {v(r+4*rb,4)}, {srcc}")
                        if rb == 0:
                            if more: A("s_waitcnt lgkmcnt(5)")
                            elif t < 6: A(f"s_waitcnt lgkmcnt({5-t})")
                            if t in (1, 3, 5, 6): slot()
                            if t == 0 and L == 0 and w2_rest:
                                w2q = vm.issue(w2_load(w2_rest.pop(0)))
                    if more:
                        rdA((i + 1) % 20, t)
                    if t in (0, 2, 4, 5): pre_slot()
            else:
                if n == 40 and L == 0:
                    assert not w2_rest
                    vm.wait(w2q)
                for t in range(5):
                    for rb in range(2):
                        c = ACC + 20 * rb + 4 * t
                        srcc = "0" if i == 0 else v(c, 4)
                        A(f"v_mfma_f32_16x16x32_bf16 {v(c,4)}, {w2reg(5*i+t)}, {v(r+4*rb,4)}, {srcc}")
                        if rb == 0 and t < 4: pre_slot()
                        if rb == 1 and t < 4: slot()
            last_of_phase = n + 1 in (20, 40, 54, 68)
            if last_of_phase:
                state["cur"] = n + 1
                ST({20: 5, 40: 7, 54: 9, 68: 11}[n + 1] + 16 * L)
                if n + 1 == 54:
                    check_flag(flq, "h", L, 1)
                    state["gate"] += 1
                    if L == 0: x1_load(1)
                    ST(14 + 16 * L)
                A.set_hook(slot, PACE if kind == "g1" else PACE // 2)
                if kind == "g1":
                    q = g1_epilogue(L, st)
                    pend_flag[n + 1 + 4] = (q, "h", L, st)
                elif st == 0:
                    g2_tail(L, 0)
                else:
                    if L == 0:
                        while slot(): pass
                        q = phase_E(0, seqs["sums"])
                        ST(12)

                        def mid():
                            vm.wait(q)
                            vm.issue(flag_store("x", 1, 0))
                        g2_tail(L, 1, mid)
                    else:
                        g2_tail(L, 1)
                    ST(13 + 16 * L)
                A.set_hook(None)
        assert not pend_flag and not Q
    ST.flush(2, 4)
    A(f"{Lend}:")
    A("s_endpgm")
    A.end_kernel(name, 512, 102, 256)
```

```python
import sys, os
from asmlib import Asm, v, a, s

NAME = "interleave_layers__ssm_conv_h3__glu_gated_bilinear__prompt"
SZ_SD = 2048 * 640 * 2
WS_XR = 0x0000000; SZ_XR = 640 * 2 * 4096
WS_YF = 0x0500000
WS_X1 = 0x0780000
WS_XN = 0x0A00000
WS_W1 = 0x0F00000; SZ_W1 = 32 * 143360
WS_W2 = 0x1360000; SZ_W2 = 8 * 56 * 5 * 1024
WS_SUM = 0x1590000; SZ_SUM = 128 * 8192
FSH = int(os.environ.get("FSH", "7"))
SZ_FL = 2 * 64 * 32 << FSH
WS_FX = 0x1690000
WS_FH = WS_FX + SZ_FL
WS_HF = 0x17A0000; SZ_HF = 64 * 114688
WS_END = WS_HF + 2 * SZ_HF
assert WS_W1 + SZ_W1 <= WS_W2 and WS_W2 + SZ_W2 <= WS_SUM and WS_SUM + SZ_SUM <= WS_FX
EPS = 0x3727c5ac
INV640 = 0x3acccccd

STAMPS = bool(int(os.environ.get("STAMPS", "0")))
WS_DBG = 0x3000000


class Stamps:
    def __init__(self, A, vreg):
        self.A = A; self.v = vreg; self.prev = None

    def init(self):
        if not STAMPS: return
        A = self.A
        A(f"v_mov_b32 v{self.v}, 0")
        A("s_memrealtime s[98:99]")
        A("s_waitcnt lgkmcnt(0)")
        A(f"v_writelane_b32 v{self.v}, s98, 62")
        self.prev = None
        self(0)

    def __call__(self, i):
        if not STAMPS: return
        A = self.A
        if self.prev is not None:
            A(f"v_writelane_b32 v{self.v}, s98, {self.prev}")
        A("s_memtime s[98:99]")
        self.prev = i

    def val(self, i, sreg):
        if not STAMPS: return
        self.A(f"v_writelane_b32 v{self.v}, s{sreg}, {i}")

    def sync(self):
        if not STAMPS: return
        if self.prev is not None:
            self.A("s_waitcnt lgkmcnt(0)")
            self.A(f"v_writelane_b32 v{self.v}, s98, {self.prev}")
        self.prev = None

    def flush(self, slot, wsreg):
        if not STAMPS: return
        A = self.A
        self(61)
        self.sync()
        A("s_memrealtime s[98:99]")
        A("s_waitcnt lgkmcnt(0)")
        A(f"v_writelane_b32 v{self.v}, s98, 63")
        A("s_mov_b64 exec, -1")
        A.srd(92, wsreg, wsreg + 1, 0x1000000, WS_DBG)
        A("s_lshl_b32 s100, s2, 10")
        A("s_lshl_b32 s101, s3, 8")
        A("s_add_u32 s100, s100, s101")
        A(f"s_add_u32 s100, s100, {slot*0x100000}")
        A("v_mbcnt_lo_u32_b32 v1, -1, 0")
        A("v_mbcnt_hi_u32_b32 v1, -1, v1")
        A("v_lshlrev_b32 v1, 2, v1")
        A(f"buffer_store_dword v{self.v}, v1, s[92:95], s100 offen")


class VM:
    def __init__(self, A):
        self.A = A; self.n = 0; self.done = 0

    def issue(self, text):
        if self.n - self.done >= 62:
            self.wait(self.n - 40)
        q = self.n
        self.n += 1
        self.A(text)
        return q

    def wait(self, seq):
        if seq < self.done: return
        self.done = seq + 1
        self.A(f"s_waitcnt vmcnt({self.n - 1 - seq})")

    def wait_all(self):
        self.done = self.n
        self.A("s_waitcnt vmcnt(0)")


def lane_wave(A, sw=3):
    A("v_lshrrev_b32 v1, 6, v0")
    A("v_and_b32 v0, 63, v0")
    A(f"v_readfirstlane_b32 s{sw}, v1")


def unpack(A, dlo, dhi, src):
    A(f"v_lshlrev_b32 v{dlo}, 16, v{src}")
    A(f"v_and_b32 v{dhi}, 0xffff0000, v{src}")


def round_bf16(A, d, x):
    A(f"v_cvt_pk_bf16_f32 v{d}, v{x}, v{x}")
    A(f"v_lshlrev_b32 v{d}, 16, v{d}")


def ln_stats(A, vsum, vsq, vm, vr, t):
    A(f"v_mul_f32 v{vsum}, {INV640:#x}, v{vsum}")
    A(f"v_mul_f32 v{vsq}, {INV640:#x}, v{vsq}")
    A(f"v_fma_f32 v{vsq}, -v{vsum}, v{vsum}, v{vsq}")
    A(f"v_max_f32 v{vsq}, 0, v{vsq}")
    round_bf16(A, vm, vsum)
    round_bf16(A, t, vsq)
    A(f"v_add_f32 v{t}, {EPS:#x}, v{t}")
    round_bf16(A, t, t)
    A(f"v_sqrt_f32 v{t}, v{t}")
    A("s_nop 0")
    round_bf16(A, t, t)
    A(f"v_rcp_f32 v{vr}, v{t}")
    A("s_nop 0")


def swap_add(A, x, t, which):
    A(f"v_mov_b32 v{t}, v{x}")
    A("s_nop 1")
    A(f"v_permlane{which}_swap_b32 v{x}, v{t}")
    A(f"v_add_f32 v{x}, v{x}, v{t}")


NPREP = 160 + 64 + max(1, 2 * SZ_FL // 16384)
def k_prep(A):
    name = "prep_kernel"
    A.launches.append(f"; @launch kernel={name} grid=({NPREP},1,1) block=(256,1,1) lds=0")
    A.begin_kernel(name)
    ST = Stamps(A, 206)
    Lend = A.label("prep_end"); Lin = A.label("prep_init")
    A(f"s_cmp_ge_u32 s2, {NPREP}")
    A(f"s_cbranch_scc1 {Lend}")
    A("s_load_dwordx8 s[4:11], s[0:1], 0")
    A("s_load_dwordx2 s[12:13], s[0:1], 96")
    ST.init()
    lane_wave(A)
    A("s_cmp_ge_u32 s2, 160")
    A(f"s_cbranch_scc1 {Lin}")
    A("s_mul_i32 s14, s2, 205")
    A("s_lshr_b32 s14, s14, 11")
    A("s_mul_i32 s15, s14, 10")
    A("s_sub_u32 s15, s2, s15")
    A("s_lshl_b32 s14, s14, 2")
    A("s_add_u32 s14, s14, s3")
    A("s_lshl_b32 s14, s14, 5")
    A("s_lshl_b32 s15, s15, 6")
    A("v_lshrrev_b32 v1, 4, v0")
    A("v_lshlrev_b32 v1, 3, v1")
    A("v_add_u32 v1, s14, v1")
    A("v_and_b32 v2, 15, v0")
    A("v_lshlrev_b32 v2, 2, v2")
    A("v_add_u32 v2, s15, v2")
    A("v_mul_u32_u24 v3, 1280, v1")
    A("v_lshl_add_u32 v3, v2, 1, v3")
    A("v_subrev_u32 v4, 5120, v3")
    A("v_lshlrev_b32 v5, 3, v2")
    A("v_lshlrev_b32 v6, 13, v2")
    A("v_add_u32 v6, 4080, v6")
    A("v_lshlrev_b32 v7, 1, v1")
    A("v_sub_u32 v6, v6, v7")
    A("s_movk_i32 s40, 5120")
    A("s_waitcnt lgkmcnt(0)")
    A.srd(16, 6, 7, SZ_SD)
    A.srd(20, 8, 9, SZ_SD)
    A.srd(24, 10, 11, 640 * 8)
    A.srd(28, 12, 13, SZ_XR, WS_XR)
    KR, VR, SR, KU, W, KV, VT, O = 8, 32, 52, 64, 112, 128, 164, 172
    A(f"buffer_load_dwordx4 {v(SR,4)}, v5, s[24:27], 0 offen")
    A(f"buffer_load_dwordx4 {v(SR+4,4)}, v5, s[24:27], 0 offen offset:16")
    for r in range(4):
        A(f"buffer_load_dwordx2 {v(KR+2*r,2)}, v4, s[16:19], 0 offen offset:{1280*r}")
    A(f"buffer_load_dwordx2 {v(VR,2)}, v4, s[20:23], 0 offen offset:3840")
    for r in range(8):
        so = "0" if r < 4 else "s40"
        A(f"buffer_load_dwordx2 {v(KR+2*(r+4),2)}, v3, s[16:19], {so} offen offset:{1280*(r&3)}")
        A(f"buffer_load_dwordx2 {v(VR+2*(r+1),2)}, v3, s[20:23], {so} offen offset:{1280*(r&3)}")
    for i in range(8):
        A(f"s_mov_b32 s{32+i}, {i*4096}")
    ST(1)
    A("s_waitcnt vmcnt(21)")
    for c in range(4):
        unpack(A, W + 0 + c, W + 4 + c, SR + 2 * c)
        unpack(A, W + 8 + c, W + 12 + c, SR + 2 * c + 1)
    A("s_waitcnt vmcnt(16)")
    for r in range(4):
        unpack(A, KU + 4 * r, KU + 4 * r + 1, KR + 2 * r)
        unpack(A, KU + 4 * r + 2, KU + 4 * r + 3, KR + 2 * r + 1)
    for r in range(-1, 8):
        if r >= 0:
            A(f"s_waitcnt vmcnt({14 - 2*r})")
            ki = r + 4
            unpack(A, KU + 4 * ki, KU + 4 * ki + 1, KR + 2 * ki)
            unpack(A, KU + 4 * ki + 2, KU + 4 * ki + 3, KR + 2 * ki + 1)
        unpack(A, VT, VT + 1, VR + 2 * (r + 1))
        unpack(A, VT + 2, VT + 3, VR + 2 * (r + 1) + 1)
        for p in range(2):
            d = KV + 4 * (r + 1) + 2 * p
            A(f"v_pk_mul_f32 {v(d,2)}, {v(KU+4*(r+4-3)+2*p,2)}, {v(W+12+2*p,2)}")
        for j in (2, 1, 0):
            for p in range(2):
                d = KV + 4 * (r + 1) + 2 * p
                A(f"v_pk_fma_f32 {v(d,2)}, {v(KU+4*(r+4-j)+2*p,2)}, {v(W+4*j+2*p,2)}, {v(d,2)}")
        for p in range(2):
            d = KV + 4 * (r + 1) + 2 * p
            A(f"v_pk_mul_f32 {v(d,2)}, {v(d,2)}, {v(VT+2*p,2)}")
    ST(2)
    for c in range(4):
        for p in range(2):
            o = O + 4 * (2 * c + p)
            for i in range(4):
                rlo = 6 + p - 2 * i
                rhi = rlo - 1
                A(f"v_cvt_pk_bf16_f32 v{o+i}, v{KV+4*(rlo+1)+c}, v{KV+4*(rhi+1)+c}")
            A(f"buffer_store_dwordx4 {v(o,4)}, v6, s[28:31], s{32+2*c+p} offen")
    ST.flush(0, 12)
    A("s_endpgm")
    A(f"{Lin}:")
    A("s_sub_u32 s14, s2, 160")
    A("s_cmp_ge_u32 s14, 64")
    A("s_cselect_b32 s15, 0, -1")
    A("s_lshl_b32 s14, s14, 14")
    A("s_lshl_b32 s16, s3, 12")
    A("s_add_u32 s14, s14, s16")
    A("v_lshlrev_b32 v2, 4, v0")
    for i in range(4):
        A(f"v_mov_b32 v{4+i}, s15")
    A("s_waitcnt lgkmcnt(0)")
    A.srd(16, 12, 13, SZ_SUM + 2 * SZ_FL, WS_SUM)
    for i in range(4):
        A(f"buffer_store_dwordx4 v[4:7], v2, s[16:19], s14 offen offset:{1024*i}")
    A(f"{Lend}:")
    A("s_endpgm")
    A.end_kernel(name, 208, 102, 208)


CH_LDS = 25920
NCONV = 160 + 56 + 32
def k_conv(A):
    name = "conv_kernel"
    A.launches.append(f"; @launch kernel={name} grid=({NCONV},1,1) block=(256,1,1) lds={4*CH_LDS}")
    A.begin_kernel(name)
    ST = Stamps(A, 176)
    Lend = A.label("conv_end"); Lw1 = A.label("conv_w1"); Lw2 = A.label("conv_w2")
    A(f"s_cmp_ge_u32 s2, {NCONV}")
    A(f"s_cbranch_scc1 {Lend}")
    A("s_load_dwordx4 s[4:7], s[0:1], 32")
    A("s_load_dwordx4 s[8:11], s[0:1], 56")
    A("s_load_dwordx2 s[12:13], s[0:1], 72")
    A("s_load_dwordx2 s[14:15], s[0:1], 96")
    ST.init()
    ST.sync()
    lane_wave(A)
    A("s_cmp_ge_u32 s2, 216")
    A(f"s_cbranch_scc1 {Lw2}")
    A("s_cmp_ge_u32 s2, 160")
    A(f"s_cbranch_scc1 {Lw1}")
    A("s_and_b32 s16, s2, 7")
    A("s_mul_i32 s16, s16, 20")
    A("s_lshr_b32 s17, s2, 3")
    A("s_add_u32 s16, s16, s17")
    A("s_lshl_b32 s17, s16, 2")
    A("s_add_u32 s17, s17, s3")
    A(f"s_mul_i32 s18, s3, {CH_LDS}")
    A("v_lshlrev_b32 v2, 4, v0")
    A("s_waitcnt lgkmcnt(0)")
    A("s_sub_u32 s20, s4, 12")
    A("s_subb_u32 s21, s5, 0")
    A(f"s_mov_b32 s22, {640*4096+12:#x}")
    A("s_mov_b32 s23, 0x20000")
    A.srd(24, 6, 7, 1280)
    A.srd(28, 14, 15, SZ_XR, WS_XR)
    A.srd(40, 14, 15, SZ_SD, WS_YF)
    A("s_lshl_b32 s44, s17, 12")
    A("s_lshl_b32 s45, s17, 13")
    A("s_lshl_b32 s46, s17, 1")
    A("v_mov_b32 v3, 0")
    A("s_add_u32 s47, s44, 12")
    A("buffer_load_dwordx4 v[8:11], v3, s[20:23], s47 offen")
    A("buffer_load_ushort v12, v3, s[24:27], s46 offen")
    for c in (3, 0, 1, 2):
        A(f"s_add_u32 m0, s18, {4160*c+48}")
        A(f"s_add_u32 s47, s44, {4*c}")
        for i in range(4):
            if i == 0 and c < 3:
                A("s_mov_b64 exec, -2")
            A(f"buffer_load_dwordx4 v2, s[20:23], s47 offen offset:{1024*i} lds")
            if i == 0 and c < 3:
                A("s_mov_b64 exec, -1")
        if c == 3:
            for p in range(2):
                A(f"s_add_u32 m0, s18, {16640+4640*p}")
                A(f"s_add_u32 s47, s45, {4096*p}")
                for i in range(4):
                    A(f"buffer_load_dwordx4 v2, s[28:31], s47 offen offset:{1024*i} lds")
    ST(1)
    A("v_and_b32 v4, 3, v0")
    A("v_lshlrev_b32 v4, 1, v4")
    A("v_bfe_u32 v5, v0, 2, 1")
    A("v_add_u32 v4, v4, v5")
    A("v_and_b32 v5, 0x38, v0")
    A("v_add_u32 v4, v4, v5")
    A("v_mov_b32 v16, 0\nv_mov_b32 v17, 0\nv_mov_b32 v18, 0\nv_mov_b32 v19, 0")
    A("v_and_b32 v6, 31, v0")
    A("v_min_u32 v6, 27, v6")
    A("v_lshlrev_b32 v6, 4, v6")
    A("v_lshrrev_b32 v7, 5, v0")
    A("v_mul_u32_u24 v7, 4640, v7")
    A("v_add3_u32 v6, v6, v7, s18")
    A(f"ds_write_b128 v6, v[16:19] offset:{16640+4096}")
    A("v_and_b32 v6, 3, v0")
    A("v_mul_u32_u24 v6, 4160, v6")
    A("v_lshrrev_b32 v7, 2, v0")
    A("v_min_u32 v7, 2, v7")
    A("v_lshlrev_b32 v7, 4, v7")
    A("v_add3_u32 v6, v6, v7, s18")
    A("ds_write_b128 v6, v[16:19]")
    A("v_and_b32 v6, 3, v0")
    A("v_mul_u32_u24 v6, 4160, v6")
    A("v_bfe_u32 v7, v0, 2, 2")
    A("v_lshrrev_b32 v13, 4, v0")
    A("v_add_u32 v7, v7, v13")
    A("v_lshlrev_b32 v7, 4, v7")
    A("v_add3_u32 v20, v6, v7, s18")
    A("v_and_b32 v6, 1, v0")
    A("v_mul_u32_u24 v6, 4640, v6")
    A("v_bfe_u32 v7, v0, 1, 3")
    A("v_lshlrev_b32 v7, 6, v7")
    A("v_sub_u32 v6, v6, v7")
    A("v_lshl_add_u32 v6, v13, 4, v6")
    A(f"v_add_u32 v6, {16640+448}, v6")
    A("v_add_u32 v21, s18, v6")
    A("s_waitcnt vmcnt(24)")
    A("v_mov_b32 v22, s18")
    A("v_mov_b32 v24, 0\nv_mov_b32 v25, v8\nv_mov_b32 v26, v9\nv_mov_b32 v27, v10")
    A("v_mov_b32 v28, 0\nv_mov_b32 v29, 0\nv_mov_b32 v30, v8\nv_mov_b32 v31, v9")
    A("v_mov_b32 v19, v8")
    A("s_mov_b64 exec, 1")
    A(f"ds_write_b128 v22, v[24:27] offset:{2*4160+48}")
    A(f"ds_write_b128 v22, v[28:31] offset:{1*4160+48}")
    A(f"ds_write_b128 v22, v[16:19] offset:48")
    A("s_mov_b64 exec, -1")
    AD = 32
    A("v_and_b32 v6, 15, v0")
    A("v_lshl_add_u32 v6, v13, 2, v6")
    for i in range(4):
        A(f"v_cmp_eq_u32 s[{50+2*i}:{51+2*i}], {15-i}, v6")
    A("s_nop 1")
    for i in range(4):
        A(f"v_cndmask_b32 v{AD+i}, 0, v12, s[{50+2*i}:{51+2*i}]")
    ACC = 180
    FA = [48, 112]; FB = [80, 144]
    ST(2)
    A("s_waitcnt vmcnt(0) lgkmcnt(0)")
    ST(3)

    def rdA(buf, jp, i):
        A(f"ds_read_b128 {v(FA[buf]+4*i,4)}, v20 offset:{64*jp+512*i}")

    def rdB(buf, jp, d):
        A(f"ds_read_b128 {v(FB[buf]+4*d,4)}, v21 offset:{512*(7-d)+64*jp}")
    for i in range(8):
        rdB(0, 0, i)
    for i in range(7):
        rdA(0, 0, i)
    A("s_waitcnt lgkmcnt(7)")
    rdA(0, 0, 7)
    for nt in range(8):
        A(f"v_mfma_f32_16x16x32_bf16 {v(ACC+4*nt,4)}, {v(AD,4)}, {v(FB[0]+4*nt,4)}, 0")
    for jp in range(8):
        b = jp & 1
        A("s_waitcnt lgkmcnt(0)")
        reads = []
        if jp < 7:
            for i in range(8):
                reads.append(("A", i)); reads.append(("B", i))
        n = 0
        for i in range(8):
            for nt in range(i, 8):
                A(f"v_mfma_f32_16x16x32_bf16 {v(ACC+4*nt,4)}, {v(FA[b]+4*i,4)}, {v(FB[b]+4*(nt-i),4)}, {v(ACC+4*nt,4)}")
                n += 1
                if reads and n % 3 != 0:
                    if len(reads) == 1:
                        A("s_waitcnt lgkmcnt(8)")
                    kind, idx = reads.pop(0)
                    (rdA if kind == "A" else rdB)(1 - b, jp + 1, idx)
        assert not reads
    ST(4)
    A("v_bfe_u32 v6, v0, 1, 3")
    A("v_lshlrev_b32 v6, 6, v6")
    A("v_lshl_add_u32 v6, v13, 4, v6")
    A("v_and_b32 v7, 1, v0")
    A("v_lshl_add_u32 v6, v7, 3, v6")
    A("v_add_u32 v6, s18, v6")
    A("v_bfe_u32 v7, v0, 2, 2")
    A(f"v_mul_u32_u24 v7, {CH_LDS}, v7")
    A("v_lshl_add_u32 v7, v13, 5, v7")
    A("v_and_b32 v14, 3, v0")
    A("v_lshl_add_u32 v7, v14, 3, v7")
    A("s_lshl_b32 s47, s3, 10")
    A("v_add_u32 v7, s47, v7")
    for nt in range(8):
        A(f"v_cvt_pk_bf16_f32 v{48+2*nt}, v{ACC+4*nt}, v{ACC+4*nt+1}")
        A(f"v_cvt_pk_bf16_f32 v{48+2*nt+1}, v{ACC+4*nt+2}, v{ACC+4*nt+3}")
        A(f"ds_write_b64 v6, {v(48+2*nt,2)} offset:{512*nt}")
    A("v_and_b32 v14, 15, v4")
    A("v_lshlrev_b32 v14, 4, v14")
    A("v_bfe_u32 v15, v0, 4, 1")
    A("v_lshl_add_u32 v14, v15, 10, v14")
    A("v_lshrrev_b32 v15, 5, v0")
    A("v_mul_u32_u24 v15, 40960, v15")
    A("v_add_u32 v14, v14, v15")
    A(f"s_mul_i32 s47, s3, {16*40960}")
    A("s_lshr_b32 s48, s16, 3")
    A("s_lshl_b32 s48, s48, 11")
    A("s_add_u32 s47, s47, s48")
    A("s_bfe_u32 s48, s16, 0x20001")
    A("s_lshl_b32 s48, s48, 8")
    A("s_add_u32 s47, s47, s48")
    A("s_and_b32 s48, s16, 1")
    A("s_lshl_b32 s48, s48, 3")
    A("s_add_u32 s47, s47, s48")
    A("s_waitcnt lgkmcnt(0)")
    A("s_barrier")
    ST(5)
    YR = 64
    for i in range(8):
        A(f"ds_read_b64_tr_b16 {v(YR+2*i,2)}, v7 offset:{128*i}")
    for i in range(8):
        A(f"s_waitcnt lgkmcnt({7-i})")
        A(f"buffer_store_dwordx2 {v(YR+2*i,2)}, v14, s[40:43], s47 offen")
        A(f"s_add_u32 s47, s47, {2*40960}")
    ST.flush(1, 14)
    A("s_endpgm")

    A(f"{Lw1}:")
    A("s_sub_u32 s16, s2, 160")
    A("s_and_b32 s17, s16, 1")
    A("s_lshr_b32 s16, s16, 1")
    A("s_waitcnt lgkmcnt(0)")
    A("s_cmp_ge_u32 s3, 2")
    A("s_cselect_b32 s20, s10, s8")
    A("s_cselect_b32 s21, s11, s9")
    A("s_cmp_ge_u32 s16, 27")
    A(f"s_cselect_b32 s22, 0, {640*3456:#x}")
    A("s_mov_b32 s23, 0x20000")
    A.srd(24, 14, 15, SZ_W1, WS_W1)
    A("v_lshrrev_b32 v2, 3, v0")
    A("v_mul_u32_u24 v2, 3456, v2")
    A("v_and_b32 v3, 7, v0")
    A("v_lshl_add_u32 v2, v3, 4, v2")
    A("s_lshl_b32 s32, s17, 1")
    A("s_and_b32 s33, s3, 1")
    A("s_add_u32 s32, s32, s33")
    A(f"s_mul_i32 s32, s32, {160*3456}")
    A("s_min_u32 s33, s16, 26")
    A("s_lshl_b32 s33, s33, 7")
    A("s_add_u32 s32, s32, s33")
    A("s_mul_i32 s33, s3, 20480")
    for i in range(20):
        A(f"s_add_u32 m0, s33, {1024*i}")
        A("s_nop 0")
        A("buffer_load_dwordx4 v2, s[20:23], s32 offen lds")
        A(f"s_add_u32 s32, s32, {8*3456}")
    ST(1)
    A("v_lshrrev_b32 v4, 4, v0")
    A("v_bfe_u32 v5, v0, 2, 2")
    A("v_lshl_add_u32 v5, v4, 3, v5")
    A("v_lshlrev_b32 v5, 7, v5")
    A("v_and_b32 v6, 1, v0")
    A("v_lshl_add_u32 v5, v6, 3, v5")
    A("v_bfe_u32 v6, v0, 1, 1")
    A("v_mul_u32_u24 v6, 40960, v6")
    A("s_lshl_b32 s34, s3, 5")
    A("v_add3_u32 v5, v5, v6, s34")
    A("v_lshlrev_b32 v6, 4, v0")
    for j in range(2):
        A("s_lshl_b32 s34, s16, 3")
        A("s_lshl_b32 s35, s3, 1")
        A("s_add_u32 s34, s34, s35")
        A(f"s_add_u32 s34, s34, {j}")
        A("s_mul_i32 s35, s34, 9363")
        A("s_lshr_b32 s35, s35, 16")
        A("s_mul_i32 s36, s35, 7")
        A("s_sub_u32 s34, s34, s36")
        A("s_mul_i32 s35, s35, 143360")
        A("s_lshl_b32 s34, s34, 10")
        A("s_add_u32 s34, s34, s35")
        A("s_mul_i32 s35, s17, 71680")
        A(f"s_add_u32 s{38+j}, s34, s35")
    A("s_waitcnt vmcnt(0)")
    A("s_barrier")
    ST(2)
    F = 16
    for kp in range(5):
        for kk in range(2):
            for j in range(2):
                f = F + 16 * kp + 8 * kk + 4 * j
                off = 4096 * (2 * kp + kk) + 16 * j
                A(f"ds_read_b64_tr_b16 {v(f,2)}, v5 offset:{off}")
                A(f"ds_read_b64_tr_b16 {v(f+2,2)}, v5 offset:{off+512}")
        for kk in range(2):
            for j in range(2):
                f = F + 16 * kp + 8 * kk + 4 * j
                A(f"s_waitcnt lgkmcnt({6-4*kk-2*j})")
                A(f"buffer_store_dwordx4 {v(f,4)}, v6, s[24:27], s{38+j} offen")
                A(f"s_add_u32 s{38+j}, s{38+j}, 7168")
    ST.flush(1, 14)
    A("s_endpgm")

    A(f"{Lw2}:")
    A("s_sub_u32 s16, s2, 216")
    A("s_and_b32 s17, s16, 3")
    A("s_lshr_b32 s16, s16, 2")
    A("s_waitcnt lgkmcnt(0)")
    A.srd(20, 12, 13, 1728 * 1280)
    A.srd(24, 14, 15, SZ_W2, WS_W2)
    A("v_mul_u32_u24 v2, 205, v0")
    A("v_lshrrev_b32 v2, 12, v2")
    A("v_mul_u32_u24 v3, 20, v2")
    A("v_sub_u32 v3, v0, v3")
    A("v_mul_u32_u24 v2, 1280, v2")
    A("v_lshl_add_u32 v2, v3, 4, v2")
    A(f"s_mul_i32 s32, s16, {224*1280}")
    A(f"s_mul_i32 s33, s3, {57*1280}")
    A("s_add_u32 s32, s32, s33")
    A("s_mul_i32 s33, s17, 320")
    A("s_add_u32 s32, s32, s33")
    A("v_add_u32 v2, s32, v2")
    A(f"s_mul_i32 s33, s3, {57*320}")
    for i in range(19):
        A(f"s_add_u32 m0, s33, {960*i}")
        A("s_nop 0")
        A("buffer_load_dwordx4 v2, s[20:23], 0 offen lds")
        A(f"v_add_u32 v2, {3*1280}, v2")
    ST(1)
    A("v_lshrrev_b32 v4, 4, v0")
    A("v_bfe_u32 v5, v0, 2, 2")
    A("v_and_b32 v6, 3, v0")
    A("s_lshr_b32 s34, s3, 1")
    A("s_mul_i32 s34, s34, 3")
    A("s_and_b32 s35, s3, 1")
    A("s_mul_i32 s36, s35, 160")
    for kk in range(4):
        A(f"s_add_u32 s37, s34, {kk}")
        A("s_lshl_b32 s37, s37, 2")
        A("v_add_u32 v24, s37, v4")
        A("v_mul_u32_u24 v25, 37, v24")
        A("v_lshrrev_b32 v25, 8, v25")
        A("v_mul_u32_u24 v26, 7, v25")
        A("v_sub_u32 v26, v24, v26")
        A("v_cmp_gt_u32 s[40:41], 4, v26")
        A("v_subrev_u32 v27, 4, v26")
        for hf in range(2):
            A("v_lshrrev_b32 v28, 1, v5")
            A(f"v_add_u32 v28, {2*hf}, v28")
            A("v_cmp_eq_u32 s[42:43], 3, v28")
            A("v_add_u32 v29, 4, v28")
            A("s_nop 0")
            A("v_cndmask_b32 v29, v29, v26, s[42:43]")
            A("v_cndmask_b32 v30, v27, 3, s[42:43]")
            A("v_cndmask_b32 v29, v29, v28, s[40:41]")
            A("v_cndmask_b32 v30, v30, v26, s[40:41]")
            A("v_mul_u32_u24 v31, 56, v25")
            A("v_lshl_add_u32 v31, v29, 3, v31")
            A("v_and_b32 v29, 1, v30")
            A("v_lshl_add_u32 v31, v29, 2, v31")
            A("v_and_b32 v30, 2, v30")
            A("v_add_u32 v31, v31, v30")
            A("v_and_b32 v29, 1, v5")
            A("v_add_u32 v31, v31, v29")
            A("v_mul_u32_u24 v31, 320, v31")
            A("v_add_u32 v31, s36, v31")
            A(f"v_lshl_add_u32 v{8+2*kk+hf}, v6, 4, v31")
            A(f"v_lshl_add_u32 v{16+2*kk+hf}, v6, 3, v31")
    A("s_lshl_b32 s37, s17, 1")
    A("s_add_u32 s37, s37, s35")
    A("s_mul_i32 s37, s37, 56")
    A("s_mul_i32 s38, s16, 7")
    A("s_add_u32 s37, s37, s38")
    A("s_add_u32 s37, s37, s34")
    A("s_mul_i32 s37, s37, 5120")
    A("v_lshlrev_b32 v2, 4, v0")
    A("v_add_u32 v3, 4096, v2")
    A("s_waitcnt vmcnt(0)")
    A("s_barrier")
    ST(2)
    F = 32
    for kk in range(4):
        for t in range(5):
            f = F + 20 * kk + 4 * t
            ab = 8 if t < 4 else 16
            off = 64 * (t >> 1) + 8 * (t & 1) if t < 4 else 128
            A(f"ds_read_b64_tr_b16 {v(f,2)}, v{ab+2*kk} offset:{off}")
            A(f"ds_read_b64_tr_b16 {v(f+2,2)}, v{ab+2*kk+1} offset:{off}")
        for t in range(5):
            f = F + 20 * kk + 4 * t
            A(f"s_waitcnt lgkmcnt({8-2*t})")
            if t < 4:
                A(f"buffer_store_dwordx4 {v(f,4)}, v2, s[24:27], s37 offen offset:{1024*t}")
            else:
                A(f"buffer_store_dwordx4 {v(f,4)}, v3, s[24:27], s37 offen")
        A("s_add_u32 s37, s37, 5120")
    ST.flush(1, 14)
    A(f"{Lend}:")
    A("s_endpgm")
    A.end_kernel(name, 216, 102, 216)


from ffn import k_ffn


def main():
    A = Asm()
    k_prep(A)
    k_conv(A)
    k_ffn(A, sys.modules[__name__])
    hdr = "; generated by gen/gen.py - H3 long conv (Toeplitz MFMA) + bilinear GLU, two layers"
    out = sys.argv[1] if len(sys.argv) > 1 else f"cdna_kernels/{NAME}.s"
    open(out, "w").write(A.text(hdr))


if __name__ == "__main__":
    main()
```

```python
from asmlib import v, a, s
import front

import os
G1MAP = int(os.environ.get("G1MAP", "2"))
CODEPF = int(os.environ.get("CODEPF", "1"))
W2PRE = int(os.environ.get("W2PRE", "0"))
R = 10
W2V, RING, ACC, AF, XS, YS = 32, 56, 136, 192, 220, 232
RED = 143360
RB_XN = 40960
RB_HF = 114688


def k_ffn(A, G):
    unpack, ln_stats, swap_add, round_bf16 = G.unpack, G.ln_stats, G.swap_add, G.round_bf16
    name = G.NAME + "_kernel"
    A.launches.append(f"; @launch {'kernel=' + name + ' ' if G.LIST else ''}grid=(256,1,1) block=(256,1,1) lds=163840")
    A.begin_kernel(name)
    ST = G.Stamps(A, 255)
    Lend = A.label("ffn_end"); Ldma = A.label("ffn_dma"); Lw2 = A.label("ffn_w2")
    A("s_cmp_ge_u32 s2, 256")
    A(f"s_cbranch_scc1 {Lend}")
    A("s_load_dwordx2 s[4:5], s[0:1], 96")
    A("s_load_dwordx2 s[6:7], s[0:1], 0")
    A("s_load_dwordx2 s[8:9], s[0:1], 80")
    A("s_load_dwordx4 s[64:67], s[0:1], 32")
    A("s_load_dwordx4 s[68:71], s[0:1], 56")
    A("s_load_dwordx2 s[72:73], s[0:1], 72")
    A("s_load_dwordx2 s[10:11], s[0:1], 8")
    A("s_load_dwordx2 s[74:75], s[0:1], 16")
    A("s_load_dwordx2 s[96:97], s[0:1], 24")
    A("s_load_dwordx2 s[94:95], s[0:1], 88")
    ST.init()
    ST.sync()
    G.lane_wave(A)
    A("s_and_b32 s24, s2, 7")
    A("s_lshr_b32 s58, s2, 3")
    A("s_and_b32 s26, s58, 7")
    A("s_lshr_b32 s27, s58, 3")
    if G1MAP == 0:
        A("s_mov_b32 s59, s24")
        A("s_mov_b32 s25, s58")
    else:
        m = G1MAP
        A(f"s_lshr_b32 s59, s24, {m}")
        A(f"s_lshl_b32 s59, s59, {m}")
        A(f"s_lshr_b32 s51, s58, {5-m}")
        A("s_add_u32 s59, s59, s51")
        A(f"s_and_b32 s25, s24, {(1<<m)-1}")
        A(f"s_lshl_b32 s25, s25, {5-m}")
        A(f"s_and_b32 s51, s58, {(32>>m)-1}")
        A("s_add_u32 s25, s25, s51")
    A("s_lshr_b32 s28, s3, 1")
    A("s_and_b32 s29, s3, 1")
    A("s_lshl_b32 s51, s59, 3")
    A("s_add_u32 s52, s51, s3")
    A("s_lshl_b32 s51, s24, 3")
    A("s_add_u32 s53, s51, s27")
    A(f"s_mul_i32 s30, s52, {RB_XN}")
    A(f"s_mul_i32 s32, s53, {RB_HF}")
    A(f"s_mul_i32 s51, s3, {14*2048}")
    A("s_add_u32 s32, s32, s51")
    A(f"s_mul_i32 s34, s52, {RB_HF}")
    A(f"s_mul_i32 s36, s53, {RB_XN}")
    A("s_lshl_b32 s51, s29, 10")
    A("s_add_u32 s36, s36, s51")
    A("s_lshl_b32 s38, s53, 1")
    A("s_add_u32 s38, s38, s29")
    A("s_lshl_b32 s48, s38, 13")
    A("s_lshl_b32 s51, s26, 1")
    A("s_add_u32 s51, s51, s28")
    A("s_lshl_b32 s51, s51, 9")
    A("s_add_u32 s49, s48, s51")
    A(f"s_mul_i32 s38, s38, {16*1280}")
    A("s_mul_i32 s51, s26, 160")
    A("s_add_u32 s38, s38, s51")
    F = G.FSH
    A(f"s_lshl_b32 s40, s52, {5+F}")
    A(f"s_lshl_b32 s42, s53, {5+F}")
    A(f"s_lshl_b32 s51, s26, {2+F}")
    A("s_add_u32 s42, s42, s51")
    A(f"s_lshl_b32 s51, s3, {F}")
    A("s_add_u32 s43, s42, s51")
    A(f"s_lshl_b32 s44, s53, {5+F}")
    A(f"s_lshl_b32 s51, s3, {3+F}")
    A("s_add_u32 s44, s44, s51")
    A(f"s_lshl_b32 s46, s52, {5+F}")
    A(f"s_lshl_b32 s51, s25, {F}")
    A("s_add_u32 s46, s46, s51")
    A("s_mov_b32 s50, 100000")
    A("s_cmp_eq_u32 s28, 0")
    A("s_cselect_b32 s56, -1, 0")
    A("s_cselect_b32 s57, 0, -1")
    A("v_lshlrev_b32 v2, 4, v0")
    A("v_add_u32 v3, 0x10000, v2")
    A("v_add_u32 v4, 0x20000, v2")
    A("s_lshl_b32 s51, s29, 10")
    A("v_add_u32 v5, s51, v2")
    A("v_xor_b32 v6, 1024, v5")
    A("v_lshrrev_b32 v21, 4, v0")
    A("v_and_b32 v22, 15, v0")
    A("v_lshlrev_b32 v23, 4, v22")

    def piece_off(dst, pi):
        A(f"v_lshrrev_b32 v24, 2, v{pi}")
        A(f"v_lshl_add_u32 v{dst}, v24, 11, v23")
        A(f"v_and_b32 v24, 3, v{pi}")
        A(f"v_lshl_add_u32 v{dst}, v24, 8, v{dst}")
    A("s_mul_i32 s51, s25, 7")
    A("v_add_u32 v25, s51, v21")
    piece_off(7, 25)
    A("s_mul_i32 s51, s26, 10")
    A("s_lshl_b32 s54, s28, 2")
    A("s_add_u32 s54, s54, s51")
    A("v_add_u32 v25, s54, v21")
    piece_off(8, 25)
    A("s_add_u32 s51, s51, 8")
    A("v_lshrrev_b32 v25, 1, v21")
    A("v_add_u32 v25, s51, v25")
    piece_off(9, 25)
    A("v_and_b32 v24, 1, v21")
    A("v_lshl_add_u32 v9, v24, 3, v9")
    A("v_mul_u32_u24 v24, 1280, v22")
    A("v_lshl_add_u32 v10, v21, 4, v24")
    A("s_lshl_b32 s51, s28, 6")
    A("v_add_u32 v10, s51, v10")
    A("v_lshl_add_u32 v11, v21, 3, v24")
    A("v_add_u32 v11, 128, v11")
    A("v_and_b32 v12, 31, v0")
    A(f"v_lshlrev_b32 v12, {F}, v12")
    A("v_and_b32 v13, 7, v0")
    A(f"v_lshlrev_b32 v13, {F}, v13")
    A("v_lshlrev_b32 v14, 5, v22")
    A("v_lshl_add_u32 v14, v21, 3, v14")
    for reg, x in ((15, 0), (16, 1), (17, 2)):
        A(f"s_xor_b32 s51, s3, {x}")
        A("s_mul_i32 s51, s51, 5120")
        A(f"s_add_u32 s51, s51, {RED}")
        A(f"v_add_u32 v{reg}, s51, v2")
    A("v_mov_b32 v20, 0")
    A("s_waitcnt lgkmcnt(0)")
    A.srd(12, 4, 5, G.WS_END)
    A.srd(16, 6, 7, G.SZ_SD)
    A.srd(20, 8, 9, G.SZ_SD)
    A("s_mov_b64 s[8:9], s[94:95]")
    WS = "s[12:15]"
    def epoch_load():
        A(f"s_mov_b32 s55, {G.WS_EPOCH:#x}")
        A(f"buffer_load_dword v19, v20, {WS}, s55 offen sc1")

    def poison():
        A("v_mov_b32 v30, -1")
        A("v_mov_b32 v31, -1")
        for st in range(2):
            A(f"s_add_u32 s55, s49, {G.WS_SUM + st*8*8192:#x}")
            A(f"buffer_store_dwordx2 v[30:31], v14, {WS}, s55 offen sc1")

    def dbg_srd():
        A("s_mov_b32 s80, s8")
        A("s_mov_b32 s81, s9")
        A("s_mov_b32 s82, 256")
        A("s_mov_b32 s83, 0x20000")

    def spin(test, reload):
        Lc = A.label("chk"); Lo = A.label("ok")
        saved = A.hook
        A.hook = None
        A(f"{Lc}:")
        test()
        A(f"s_cbranch_vccz {Lo}")
        A("s_cmp_eq_u32 s50, 0")
        A(f"s_cbranch_scc1 {Lo}")
        A("s_sub_u32 s50, s50, 1")
        A("s_sleep 1")
        A(reload)
        A("s_waitcnt vmcnt(0)")
        A(f"s_branch {Lc}")
        A(f"{Lo}:")
        ST.val(44 + spin.n, 50)
        spin.n += 1
        A.hook = saved
    spin.n = 0


    T, TY, X, Y = 32, 76, 96, 136
    A("v_and_b32 v24, 3, v0")
    A("v_lshrrev_b32 v25, 2, v0")
    A("v_mul_u32_u24 v252, 1280, v24")
    A("v_lshl_add_u32 v252, v25, 4, v252")
    A("s_lshl_b32 s62, s24, 8")
    A("s_lshl_b32 s54, s29, 7")
    A("s_add_u32 s62, s62, s54")
    A("s_lshl_b32 s54, s58, 2")
    A("s_add_u32 s62, s62, s54")
    A("s_mul_i32 s62, s62, 1280")

    def q_loads():
        for i in range(5):
            A(f"buffer_load_dwordx4 {v(T+4*i,4)}, v252, s[16:19], s62 offen offset:{256*i}")

    Lhelp = A.label("help"); Lw2r = A.label("w2role"); Lhdone = A.label("hdone"); Lidle = A.label("idle"); Ljoin = A.label("join")
    A("s_cmp_ge_u32 s58, 20")
    A(f"s_cbranch_scc1 {Lhelp}")
    A("s_mul_i32 s84, s24, 20")
    A("s_add_u32 s84, s84, s58")
    front.conv_role(A, G, ST, q_loads, spin, epoch_load, poison)
    ST.sync()
    A("s_mul_i32 s63, s3, 160")
    A("s_add_u32 s63, s63, s84")
    A(f"s_lshl_b32 s63, s63, {F}")
    A(f"s_add_u32 s63, s63, {G.WS_FY:#x}")
    A(f"s_branch {Ljoin}")
    A(f"{Lhelp}:")
    epoch_load()
    A("s_sub_u32 s84, s58, 20")
    A("s_lshl_b32 s84, s84, 3")
    A("s_add_u32 s84, s84, s24")
    A("s_cmp_ge_u32 s84, 88")
    A(f"s_cbranch_scc1 {Lidle}")
    A("s_cmp_ge_u32 s84, 56")
    A(f"s_cbranch_scc1 {Lw2r}")
    front.w1_role(A, G, ST, q_loads)
    ST.sync()
    A(f"s_branch {Lhdone}")
    A(f"{Lw2r}:")
    front.w2_role(A, G, ST, q_loads)
    ST.sync()
    A(f"s_branch {Lhdone}")
    A(f"{Lidle}:")
    if CODEPF:
        Lpc = A.label("pc")
        A("s_getpc_b64 s[76:77]")
        A(f"{Lpc}:")
        A(f"s_sub_u32 s76, s76, {Lpc}-{name}")
        A("s_subb_u32 s77, s77, 0")
        A(f"s_mov_b32 s78, {Lend}-{name}")
        A("s_mov_b32 s79, 0x20000")
        A("s_lshl_b32 s85, s3, 13")
        A("v_lshlrev_b32 v24, 7, v0")
        for i in range(2):
            A(f"buffer_load_dword v{56+i}, v24, s[76:79], s85 offen")
            A("s_add_u32 s85, s85, 0x8000")
    q_loads()
    A(f"{Lhdone}:")
    poison()
    A("s_waitcnt vmcnt(0)")
    A("v_add_u32 v19, 1, v19")
    A("s_barrier")
    A(f"s_lshl_b32 s63, s84, {F}")
    A(f"s_add_u32 s63, s63, {G.WS_FW:#x}")
    A(f"{Ljoin}:")
    ST(38)
    A("s_waitcnt vmcnt(0)")
    A("s_mov_b64 exec, 1")
    A(f"buffer_store_dword v19, v20, {WS}, s63 offen sc1")
    A("s_mov_b64 exec, -1")
    ST(39)
    ST.sync()
    A("s_cmp_ge_u32 s3, 2")
    A(f"s_cbranch_scc1 {Ldma}")

    A("v_and_b32 v24, 3, v0")
    A("v_lshrrev_b32 v25, 2, v0")
    A("v_lshlrev_b32 v26, 8, v25")
    A("v_lshl_add_u32 v26, v24, 3, v26")
    A("v_lshrrev_b32 v27, 2, v25")
    A("v_lshlrev_b32 v27, 11, v27")
    A("v_and_b32 v28, 3, v25")
    A("v_lshl_add_u32 v27, v28, 8, v27")
    A("v_lshl_add_u32 v27, v24, 4, v27")
    A("s_lshl_b32 s54, s3, 2")
    A("s_add_u32 s54, s54, s53")
    A(f"s_mul_i32 s54, s54, {RB_XN}")
    A("s_bfe_u32 s55, s58, 0x10002")
    A("s_mul_i32 s51, s55, 20480")
    A("s_add_u32 s51, s51, s54")
    A("s_lshl_b32 s55, s55, 10")
    A("s_add_u32 s54, s54, s55")
    A("s_and_b32 s55, s58, 3")
    A("s_lshl_b32 s55, s55, 5")
    A("s_add_u32 s51, s51, s55")
    A("s_lshl_b32 s55, s55, 1")
    A("s_add_u32 s54, s54, s55")
    S = 176

    def row_stats():
        A(f"v_add_f32 v{S}, v{S}, v{S+1}")
        A(f"v_add_f32 v{S+2}, v{S+2}, v{S+3}")
        A("s_nop 1")
        for ror in (4, 8):
            A(f"v_add_f32_dpp v{S}, v{S}, v{S} row_ror:{ror} row_mask:0xf bank_mask:0xf")
            A(f"v_add_f32_dpp v{S+2}, v{S+2}, v{S+2} row_ror:{ror} row_mask:0xf bank_mask:0xf")
            A("s_nop 1")
        for w in (16, 32):
            A(f"v_mov_b32 v{S+1}, v{S}")
            A(f"v_mov_b32 v{S+3}, v{S+2}")
            A("s_nop 0")
            A(f"v_permlane{w}_swap_b32 v{S}, v{S+1}")
            A(f"v_permlane{w}_swap_b32 v{S+2}, v{S+3}")
            A(f"v_add_f32 v{S}, v{S}, v{S+1}")
            A(f"v_add_f32 v{S+2}, v{S+2}, v{S+3}")
        ln_stats(A, S, S + 2, S + 4, S + 6, S + 1)
        A(f"v_mov_b32 v{S+5}, v{S+4}")
        A(f"v_mov_b32 v{S+7}, v{S+6}")
    for j in range(4):
        A(f"v_mov_b32 v{S+j}, 0")
    for i in range(5):
        for j in range(4):
            x = X + 8 * i + 2 * j
            unpack(A, x, x + 1, T + 4 * i + j)
            A(f"v_pk_add_f32 {v(S,2)}, {v(S,2)}, {v(x,2)}")
            A(f"v_pk_fma_f32 {v(S+2,2)}, {v(x,2)}, {v(x,2)}, {v(S+2,2)}")
    row_stats()
    for j in range(3):
        A(f"v_add_u32 v{188+j}, {64*j}, v0")
        A(f"v_min_u32 v{188+j}, 159, v{188+j}")
        A(f"v_lshlrev_b32 v{188+j}, {F}, v{188+j}")
    A("s_lshr_b32 s55, s24, 1")
    A(f"s_mul_i32 s55, s55, {160<<F}")
    A(f"s_add_u32 s55, s55, {G.WS_FY:#x}")
    fy = "\n".join(f"buffer_load_dword v{192+j}, v{188+j}, {WS}, s55 offen sc1" for j in range(3))
    A(fy)
    for i in range(20):
        x = X + 2 * i; y = Y + 2 * i
        A(f"v_pk_add_f32 {v(y,2)}, {v(x,2)}, {v(S+4,2)} neg_lo:[0,1] neg_hi:[0,1]")
        A(f"v_pk_mul_f32 {v(y,2)}, {v(y,2)}, {v(S+6,2)}")
    for j in range(4):
        A(f"v_mov_b32 v{S+j}, 0")
    A("s_waitcnt vmcnt(0)")
    spin(lambda: A("v_xor_b32 v192, v192, v19\nv_xor_b32 v193, v193, v19\nv_xor_b32 v194, v194, v19\nv_or3_b32 v192, v192, v193, v194\nv_cmp_ne_u32 vcc, 0, v192"), fy)
    ST(33)
    for i in range(5):
        A(f"s_add_u32 s55, s51, {G.WS_YF + 4096*i:#x}")
        for hh in range(2):
            A(f"buffer_load_dwordx2 {v(TY+4*i+2*hh,2)}, v26, {WS}, s55 offen offset:{128*hh} sc1")
    for i in range(5):
        A(f"s_waitcnt vmcnt({8-2*i})")
        for j in range(4):
            x = X + 8 * i + 2 * j; y = Y + 8 * i + 2 * j
            unpack(A, 28, 29, TY + 4 * i + j)
            A(f"v_pk_fma_f32 v[28:29], v[28:29], {v(y,2)}, {v(x,2)}")
            A(f"v_cvt_pk_bf16_f32 v{T+4*i+j}, v28, v29")
            unpack(A, x, x + 1, T + 4 * i + j)
            A(f"v_pk_add_f32 {v(S,2)}, {v(S,2)}, {v(x,2)}")
            A(f"v_pk_fma_f32 {v(S+2,2)}, {v(x,2)}, {v(x,2)}, {v(S+2,2)}")
    row_stats()
    for i in range(5):
        for j in range(4):
            x = X + 8 * i + 2 * j
            A(f"v_pk_add_f32 {v(x,2)}, {v(x,2)}, {v(S+4,2)} neg_lo:[0,1] neg_hi:[0,1]")
            A(f"v_pk_mul_f32 {v(x,2)}, {v(x,2)}, {v(S+6,2)}")
            A(f"v_cvt_pk_bf16_f32 v{TY+4*i+j}, v{x}, v{x+1}")
        A(f"s_add_u32 s55, s54, {G.WS_XN + 8192*i:#x}")
        A(f"buffer_store_dwordx4 {v(TY+4*i,4)}, v27, {WS}, s55 offen sc1")
    for i in range(5):
        A(f"s_add_u32 s55, s54, {G.WS_X1 + 8192*i:#x}")
        A(f"buffer_store_dwordx4 {v(T+4*i,4)}, v27, {WS}, s55 offen sc1")
    ST(31)
    A(f"s_lshl_b32 s55, s3, {7+F}")
    A("s_add_u32 s55, s55, s42")
    A(f"s_add_u32 s55, s55, {G.WS_FX:#x}")
    A("s_waitcnt vmcnt(0)")
    A("s_mov_b64 exec, 15")
    A(f"buffer_store_dword v19, v12, {WS}, s55 offen sc1")
    A("s_mov_b64 exec, -1")
    ST.sync()
    A(f"s_branch {Lw2}")
    A(f"{Ldma}:")
    A("s_mul_i32 s51, s25, 7")
    A("s_add_u32 s54, s51, 6")
    A("s_lshr_b32 s51, s51, 3")
    A("s_lshr_b32 s54, s54, 3")
    A("s_sub_u32 s54, s54, s51")
    A("v_and_b32 v24, 1, v0")
    A("v_mul_u32_u24 v24, s54, v24")
    A(f"v_lshlrev_b32 v24, {F+1}, v24")
    A("s_lshl_b32 s51, s51, 1")
    A("s_add_u32 s51, s51, s29")
    A(f"s_lshl_b32 s55, s51, {F}")
    A(f"s_add_u32 s55, s55, {G.WS_FW:#x}")
    fw = f"buffer_load_dword v18, v24, {WS}, s55 offen sc1"
    A(fw)
    A("s_waitcnt vmcnt(0)")
    spin.n -= 1
    spin(lambda: A("v_cmp_ne_u32 vcc, v19, v18"), fw)
    ST(33)
    A("s_mul_i32 s51, s25, 143360")
    A("s_mul_i32 s54, s29, 71680")
    A("s_add_u32 s51, s51, s54")
    A(f"s_add_u32 s51, s51, {G.WS_W1:#x}")
    vm = G.VM(A)
    for i in range(18):
        A(f"s_add_u32 m0, s54, {4096*i}")
        A("s_nop 0")
        for j in range(4 if i < 17 else 2):
            vm.issue(f"buffer_load_dwordx4 v2, {WS}, s51 offen offset:{1024*j} sc1 lds")
        A("s_add_u32 s51, s51, 4096")
    ST.sync()
    A(f"{Lw2}:")
    ST(1)
    A("s_lshl_b32 s51, s3, 3")
    A("s_lshr_b32 s54, s26, 1")
    A("s_add_u32 s51, s51, s54")
    A("s_add_u32 s51, s51, 56")
    A(f"s_lshl_b32 s55, s51, {F}")
    A(f"s_add_u32 s55, s55, {G.WS_FW:#x}")
    A("v_and_b32 v24, 1, v0")
    A(f"v_lshlrev_b32 v24, {F+2}, v24")
    A("s_waitcnt vmcnt(40)")
    A(fw)
    A("s_waitcnt vmcnt(0)")
    spin(lambda: A("v_cmp_ne_u32 vcc, v19, v18"), fw)
    A("s_barrier")
    ST(2)
    vm = G.VM(A)

    def w2reg(n):
        return a(4 * n, 4) if n < 64 else v(W2V + 4 * (n - 64), 4)
    A("s_mul_i32 s60, s26, 56")
    A("s_mul_i32 s54, s3, 14")
    A("s_add_u32 s60, s60, s54")
    A("s_mul_i32 s60, s60, 5120")
    A(f"s_add_u32 s60, s60, {G.WS_W2:#x}")
    A("s_lshl_b32 s54, s28, 11")
    A("v_add_u32 v244, s54, v2")
    A("v_xor_b32 v245, 2048, v244")
    A("v_add_u32 v246, 4096, v2")

    def w2_load(n):
        i, sl = divmod(n, 5)
        vo = ("v244", "v244", "v245", "v245", "v246")[sl]
        off = (0, 1024, 0, 1024, 0)[sl]
        txt = f"buffer_load_dwordx4 {w2reg(n)}, {vo}, {WS}, s60 offen offset:{off} sc1"
        if sl == 4:
            txt += "\ns_add_u32 s60, s60, 5120"
        return txt
    for n in range(5 * W2PRE):
        vm.issue(w2_load(n))
    w2_rest = list(range(5 * W2PRE, 70))

    def y_tiles():
        A("s_mul_i32 s51, s26, 10")
        A("s_lshl_b32 s54, s28, 2")
        A("s_add_u32 s54, s54, s51")
        A("v_add_u32 v24, s54, v21")
        A("v_lshlrev_b32 v24, 8, v24")
        A("v_lshl_add_u32 v24, v22, 3, v24")
        A("s_lshl_b32 s51, s51, 1")
        A("s_add_u32 s51, s51, 16")
        A("v_add_u32 v25, s51, v21")
        A("v_lshlrev_b32 v25, 7, v25")
        A("v_lshl_add_u32 v25, v22, 3, v25")
        A("s_lshl_b32 s51, s53, 1")
        A("s_add_u32 s51, s51, s29")
        A("s_mul_i32 s51, s51, 20480")
        for st in range(2):
            for j in range(4, 6):
                A(f"v_mov_b32 v{YS+6*st+j}, 0")
            A(f"s_add_u32 s55, s51, {G.WS_YF + st*8*20480:#x}")
            vm.issue(f"buffer_load_dwordx2 {v(YS+6*st,2)}, v24, {WS}, s55 offen sc1")
            vm.issue(f"buffer_load_dwordx2 {v(YS+6*st+2,2)}, v24, {WS}, s55 offen offset:128 sc1")
            A("s_mov_b64 exec, s[56:57]")
            vm.issue(f"buffer_load_dwordx2 {v(YS+6*st+4,2)}, v25, {WS}, s55 offen sc1")
            A("s_mov_b64 exec, -1")

    def flag_load(kind, L, st):
        base = (G.WS_FX if kind == "x" else G.WS_FH) + L * (2048 << F) + st * (128 << F)
        sreg, vreg = (40, 12) if kind == "x" else (44, 13)
        return f"s_add_u32 s55, s{sreg}, {base:#x}\nbuffer_load_dword v18, v{vreg}, {WS}, s55 offen sc1"

    def flag_store(kind, L, st):
        base = (G.WS_FX if kind == "x" else G.WS_FH) + L * (2048 << F) + st * (128 << F)
        sreg = 43 if kind == "x" else 46
        return (f"s_add_u32 s55, s{sreg}, {base:#x}\ns_mov_b64 exec, 1\n"
                f"buffer_store_dword v19, v20, {WS}, s55 offen sc1\ns_mov_b64 exec, -1")

    def check_flag(seq, kind, L, st):
        vm.wait(seq)
        spin(lambda: A("v_cmp_ne_u32 vcc, v19, v18"), flag_load(kind, L, st))

    def rdA(ks, t):
        off = ks * 7168 + t * 1024
        A(f"ds_read_b128 {v(AF+4*t,4)}, v{2+(off>>16)} offset:{off & 0xffff}")

    SU = 176

    def sums_load_text(st):
        out = []
        for hi in range(2):
            out.append(f"s_add_u32 s55, s48, {G.WS_SUM + st*8*8192 + hi*4096:#x}")
            for p in range(8):
                out.append(f"buffer_load_dwordx2 {v(SU+2*(8*hi+p),2)}, v14, {WS}, s55 offen offset:{512*p} sc1")
        return out

    def issue_sums(st):
        last = None
        for t in sums_load_text(st):
            if t.startswith("s_add"):
                A(t)
            else:
                last = vm.issue(t)
        return last

    def phase_E(st, seq):
        vm.wait(seq)
        U = 208

        def test():
            A(f"v_pk_add_f32 {v(U,2)}, {v(SU,2)}, {v(SU+2,2)}")
            A(f"v_pk_add_f32 {v(U+2,2)}, {v(SU+4,2)}, {v(SU+6,2)}")
            for p in range(4, 16, 2):
                A(f"v_pk_add_f32 {v(U,2)}, {v(U,2)}, {v(SU+2*p,2)}")
                A(f"v_pk_add_f32 {v(U+2,2)}, {v(U+2,2)}, {v(SU+2*p+2,2)}")
            A(f"v_pk_add_f32 {v(U,2)}, {v(U,2)}, {v(U+2,2)}")
            A(f"v_cmp_u_f32 vcc, v{U}, v{U+1}")
        ST(34 + 2 * st)
        spin(test, "\n".join(sums_load_text(st)))
        ST(35 + 2 * st)
        Z = SU
        for h in range(2):
            A(f"v_mov_b32 v{Z+4*h}, v{U+h}")
            A(f"v_mov_b32 v{Z+4*h+2}, v{U+h}")
        A("s_nop 1")
        for h in range(2):
            A(f"v_permlane16_swap_b32 v{Z+4*h}, v{Z+4*h+2}")
        for h in range(4):
            A(f"v_mov_b32 v{Z+2*h+1}, v{Z+2*h}")
        A("s_nop 1")
        for h in range(4):
            A(f"v_permlane32_swap_b32 v{Z+2*h}, v{Z+2*h+1}")
        S1, S2, SA, SB, SC, SD, SE, SF = range(Z, Z + 8)
        M2, R2, M3, R3, T0, T1, T2 = Z + 8, Z + 10, Z + 12, Z + 14, Z + 16, Z + 17, Z + 18
        A(f"v_mov_b32 v{T0}, v{S1}")
        A(f"v_mov_b32 v{T1}, v{S2}")
        ln_stats(A, T0, T1, M2, R2, T2)
        A(f"v_fma_f32 v{T0}, -v{M2}, v{SE}, v{SA}")
        A(f"v_fma_f32 v{S1}, v{R2}, v{T0}, v{S1}")
        A(f"v_fma_f32 v{T0}, -v{M2}, v{SA}, v{SB}")
        A(f"v_add_f32 v{T0}, v{T0}, v{T0}")
        A(f"v_mul_f32 v{T1}, v{M2}, v{SF}")
        A(f"v_fma_f32 v{T1}, -2.0, v{SD}, v{T1}")
        A(f"v_fma_f32 v{T1}, v{M2}, v{T1}, v{SC}")
        A(f"v_fma_f32 v{T0}, v{R2}, v{T1}, v{T0}")
        A(f"v_fma_f32 v{S2}, v{R2}, v{T0}, v{S2}")
        ln_stats(A, S1, S2, M3, R3, T2)
        for r in (M2, R2, M3, R3):
            A(f"v_mov_b32 v{r+1}, v{r}")
        XN = Z + 20
        P = Z + 26
        for j in range(6):
            x = P + 6 * (j & 1); y = x + 2; d = x + 4
            unpack(A, x, x + 1, XS + 6 * st + j)
            unpack(A, y, y + 1, YS + 6 * st + j)
            A(f"v_pk_add_f32 {v(d,2)}, {v(x,2)}, {v(M2,2)} neg_lo:[0,1] neg_hi:[0,1]")
            A(f"v_pk_mul_f32 {v(d,2)}, {v(d,2)}, {v(R2,2)}")
            A(f"v_pk_fma_f32 {v(d,2)}, {v(d,2)}, {v(y,2)}, {v(x,2)}")
            A(f"v_cvt_pk_bf16_f32 v{XS+6*st+j}, v{d}, v{d+1}")
            unpack(A, x, x + 1, XS + 6 * st + j)
            A(f"v_pk_add_f32 {v(x,2)}, {v(x,2)}, {v(M3,2)} neg_lo:[0,1] neg_hi:[0,1]")
            A(f"v_pk_mul_f32 {v(x,2)}, {v(x,2)}, {v(R3,2)}")
            A(f"v_cvt_pk_bf16_f32 v{XN+j}, v{x}, v{x+1}")
        A(f"s_add_u32 s55, s36, {G.WS_XN + G.SZ_SD + st*4*RB_XN:#x}")
        vm.issue(f"buffer_store_dwordx4 {v(XN,4)}, v8, {WS}, s55 offen sc1")
        A("s_mov_b64 exec, s[56:57]")
        q = vm.issue(f"buffer_store_dwordx2 {v(XN+4,2)}, v9, {WS}, s55 offen sc1")
        A("s_mov_b64 exec, -1")
        return q

    def g1_epilogue(L, st):
        A("s_nop 4")
        A(f"s_add_u32 s54, s34, {G.WS_HF + L*G.SZ_HF + st*4*RB_HF:#x}")
        last = None
        for t in range(7):
            for rb in range(2):
                c = ACC + 8 * t + 4 * rb
                A(f"v_permlane32_swap_b32 v{c}, v{c+2}")
                A(f"v_permlane32_swap_b32 v{c+1}, v{c+3}")
            for rb in range(2):
                c = ACC + 8 * t + 4 * rb
                A(f"v_pk_mul_f32 {v(c,2)}, {v(c,2)}, {v(c+2,2)}")
            for rb in range(2):
                c = ACC + 8 * t + 4 * rb
                d = ACC + (0 if t < 4 else 32) + 4 * rb + (t & 3)
                A(f"v_cvt_pk_bf16_f32 v{d}, v{c}, v{c+1}")
            if t == 3:
                for rb in range(2):
                    vm.issue(f"buffer_store_dwordx4 {v(ACC+4*rb,4)}, v7, {WS}, s54 offen offset:{1024*rb} sc1")
        for rb in range(2):
            x = ACC + 32 + 4 * rb
            A(f"v_mov_b32 v{24+4*rb}, v{x+2}")
            A(f"v_mov_b32 v{25+4*rb}, v{x}")
        A("s_nop 0")
        for rb in range(2):
            x = ACC + 32 + 4 * rb
            A(f"v_permlane16_swap_b32 v{24+4*rb}, v{x+3}")
            A(f"v_permlane16_swap_b32 v{25+4*rb}, v{26+4*rb}")
        A("s_nop 0")
        for rb in range(2):
            x = ACC + 32 + 4 * rb
            A(f"v_mov_b32_dpp v{26+4*rb}, v{x+1} quad_perm:[0,1,2,3] row_mask:0x8 bank_mask:0xf")
        A("s_nop 1")
        for rb in range(2):
            x = ACC + 32 + 4 * rb
            A(f"v_permlane32_swap_b32 v{26+4*rb}, v{x+3}")
        A("s_mov_b32 exec_hi, 0xffff")
        for rb in range(2):
            last = vm.issue(f"buffer_store_dwordx4 {v(ACC+32+4*rb,4)}, v7, {WS}, s54 offen offset:{2048+1024*rb} sc1")
        A("s_mov_b32 exec_hi, -1")
        return last

    def g2_tail(L, st, mid=None):
        A("s_barrier")
        A("s_nop 5")
        for t in range(5):
            A(f"ds_write_b128 v16, {v(ACC+20+4*t,4)} offset:{1024*t}")
        A("s_waitcnt lgkmcnt(0)")
        A("s_barrier")
        for t in (2, 3, 4, 0, 1):
            A(f"ds_read_b128 {v(ACC+20+4*t,4)}, v15 offset:{1024*t}")
        for n, t in enumerate((2, 3, 4, 0, 1)):
            A(f"s_waitcnt lgkmcnt({4-n})" if n < 3 else f"s_waitcnt lgkmcnt({3+4-n})")
            for j in range(2):
                A(f"v_pk_add_f32 {v(ACC+4*t+2*j,2)}, {v(ACC+4*t+2*j,2)}, {v(ACC+20+4*t+2*j,2)}")
            if n == 2:
                for tt in (2, 3, 4):
                    A(f"ds_write_b128 v15, {v(ACC+4*tt,4)} offset:{1024*tt}")
        A("s_waitcnt lgkmcnt(0)")
        A("s_barrier")
        for t in (2, 3, 4):
            A(f"ds_read_b128 {v(ACC+20+4*t,4)}, v17 offset:{1024*t}")
        if mid: mid()
        XU = 176
        for j in range(6):
            unpack(A, XU + 2 * j, XU + 2 * j + 1, XS + 6 * st + j)
        O = [ACC, ACC + 2, ACC + 4, ACC + 6, ACC + 16, ACC + 18]
        src = [ACC + 28, ACC + 30, ACC + 32, ACC + 34, ACC + 36, ACC + 38]
        for j in range(6):
            if j % 2 == 0:
                A(f"s_waitcnt lgkmcnt({2-j//2})")
            A(f"v_pk_add_f32 {v(O[j],2)}, {v(O[j],2)}, {v(src[j],2)}")
        for j in range(6):
            A(f"v_cvt_pk_bf16_f32 v{ACC+20+j}, v{O[j]}, v{O[j]+1}")
        for j in range(6):
            unpack(A, O[j], O[j] + 1, ACC + 20 + j)
            A(f"v_pk_add_f32 {v(O[j],2)}, {v(O[j],2)}, {v(XU+2*j,2)}")
            A(f"v_cvt_pk_bf16_f32 v{XS+6*st+j}, v{O[j]}, v{O[j]+1}")
        if L == 1:
            A(f"s_add_u32 s55, s38, {st*128*1280}")
            vm.issue(f"buffer_store_dwordx4 {v(XS+6*st,4)}, v10, s[20:23], s55 offen")
            A("s_mov_b64 exec, s[56:57]")
            vm.issue(f"buffer_store_dwordx2 {v(XS+6*st+4,2)}, v11, s[20:23], s55 offen")
            A("s_mov_b64 exec, -1")
            return
        for j in (4, 5):
            A(f"v_cndmask_b32 v{XS+6*st+j}, 0, v{XS+6*st+j}, s[56:57]")
        Z = 188
        for j in range(6):
            x = 204 + 6 * (j & 1); y = x + 2; p = x + 4
            unpack(A, x, x + 1, XS + 6 * st + j)
            unpack(A, y, y + 1, YS + 6 * st + j)
            A(f"v_pk_mul_f32 {v(p,2)}, {v(x,2)}, {v(y,2)}")
            terms = [(x, None), (x, x), (p, None), (p, x), (p, p), (p, y), (y, None), (y, y)]
            for n, (u, w) in enumerate(terms):
                z = Z + 2 * n
                if j == 0:
                    if w is None:
                        A(f"v_mov_b32 v{z}, v{u}\nv_mov_b32 v{z+1}, v{u+1}")
                    else:
                        A(f"v_pk_mul_f32 {v(z,2)}, {v(u,2)}, {v(w,2)}")
                elif w is None:
                    A(f"v_pk_add_f32 {v(z,2)}, {v(z,2)}, {v(u,2)}")
                else:
                    A(f"v_pk_fma_f32 {v(z,2)}, {v(u,2)}, {v(w,2)}, {v(z,2)}")
        for n in range(8):
            A(f"v_add_f32 v{Z+2*n}, v{Z+2*n}, v{Z+2*n+1}")
        A("s_nop 1")
        for n in range(4):
            A(f"v_permlane32_swap_b32 v{Z+4*n}, v{Z+4*n+2}")
        for n in range(4):
            A(f"v_add_f32 v{Z+4*n}, v{Z+4*n}, v{Z+4*n+2}")
        A("s_nop 1")
        for n in range(2):
            A(f"v_permlane16_swap_b32 v{Z+8*n}, v{Z+8*n+4}")
        for n in range(2):
            A(f"v_add_f32 v{Z+n}, v{Z+8*n}, v{Z+8*n+4}")
        A(f"s_add_u32 s55, s49, {G.WS_SUM + st*8*8192:#x}")
        vm.issue(f"buffer_store_dwordx2 {v(Z,2)}, v14, {WS}, s55 offen sc1")

    PH = [("g1", 0, 20), ("g1", 1, 20), ("g2", 0, 14), ("g2", 1, 14)]
    PACE = int(os.environ.get("PACE", "12"))
    FILL0 = int(os.environ.get("FILL0", "4"))
    for L in range(2):
        stream = []
        for kind, st, n in PH:
            stream += [(kind, st, i) for i in range(n)]
        seqs = {}
        state = {"next": 0, "gate": 0, "cur": 0}
        Q = []
        phase_of = lambda n: 0 if n < 20 else 1 if n < 40 else 2 if n < 54 else 3

        def entry_ops(n):
            kind, st, i = stream[n]
            r = RING + 8 * (n % R)
            o = 2048 * (i & 1)
            if kind == "g1":
                base = G.WS_XN + L * G.SZ_SD + st * 4 * RB_XN + (i & ~1) * 2048
                pre = f"s_add_u32 s52, s30, {base:#x}" if not i & 1 else None
                return [(None, pre, f"buffer_load_dwordx4 {v(r,4)}, v2, {WS}, s52 offen offset:{o} sc1"),
                        (n, None, f"buffer_load_dwordx4 {v(r+4,4)}, v2, {WS}, s52 offen offset:{o+1024} sc1")]
            base = G.WS_HF + L * G.SZ_HF + st * 4 * RB_HF + (i & ~1) * 2048
            pre = f"s_add_u32 s52, s32, {base:#x}" if not i & 1 else None
            return [(None, pre, f"buffer_load_dwordx4 {v(r,4)}, v5, {WS}, s52 offen offset:{o} sc1"),
                    (n, None, f"buffer_load_dwordx4 {v(r+4,4)}, v6, {WS}, s52 offen offset:{o} sc1")]

        def refill():
            if Q: return
            n = state["next"]
            if n < len(stream) and n < state["cur"] + R and phase_of(n) < state["gate"]:
                Q.extend(entry_ops(n))
                state["next"] += 1

        def pre_slot():
            refill()
            if Q and Q[0][1]:
                A(Q[0][1]); Q[0] = (Q[0][0], None, Q[0][2])

        def slot():
            pre_slot()
            if Q:
                tag, _, text = Q.pop(0)
                q = vm.issue(text)
                if tag is not None: seqs[tag] = q
                return True
            return False

        def need(n):
            while n not in seqs:
                assert slot(), n
            vm.wait(seqs[n])

        def x1_load(st):
            A(f"s_add_u32 s55, s36, {G.WS_X1 + st*4*RB_XN:#x}")
            vm.issue(f"buffer_load_dwordx4 {v(XS+6*st,4)}, v8, {WS}, s55 offen sc1")
            vm.issue(f"buffer_load_dwordx2 {v(XS+6*st+4,2)}, v9, {WS}, s55 offen sc1")

        q = vm.issue(flag_load("x", L, 0))
        check_flag(q, "x", L, 0)
        ST(3 + 16 * L)
        state["gate"] = 1
        for _ in range(2 * FILL0): slot()
        pend_flag = {}
        if L == 0:
            y_tiles()
        if L == 1:
            sq = issue_sums(1)
            ST(32)
            A.set_hook(slot, PACE)
            q = phase_E(1, sq)
            A.set_hook(None)
            pend_flag[4] = (q, "x", 1, 1)
        for t in range(7):
            rdA(0, t)
        ST(4 + 16 * L)
        fl_at = {8: ("x", 1), 30: ("h", 0), 49: ("h", 1)}
        gate_at = {12: ("x", 1), 34: ("h", 0)}
        flq = None
        sumq = None
        for n, (kind, st, i) in enumerate(stream):
            state["cur"] = n
            if n in (20, 40, 54):
                ST({20: 6, 40: 8, 54: 10}[n] + 16 * L)
            if n in gate_at:
                check_flag(flq, gate_at[n][0], L, gate_at[n][1])
                state["gate"] += 1
                if L == 0 and n == 34: x1_load(0)
            if n in pend_flag:
                q, k_, L_, st_ = pend_flag.pop(n)
                vm.wait(q)
                vm.issue(flag_store(k_, L_, st_))
            if n in fl_at:
                flq = vm.issue(flag_load(fl_at[n][0], L, fl_at[n][1]))
            if L == 0 and n == 54 + 5:
                txt = sums_load_text(0)
                txt = [x.replace("s55", "s61") for x in txt]
                pre = None
                for x in txt:
                    if x.startswith("s_add"): pre = x
                    else:
                        Q.append((None, pre, x)); pre = None
                Q[-1] = ("sums", Q[-1][1], Q[-1][2])
            if L == 0 and n == 2:
                Ls = A.label("noadd")
                A("s_cmp_lg_u32 s3, 3")
                A(f"s_cbranch_scc1 {Ls}")
                dbg_srd()
                A("v_mov_b32 v31, 1")
                A("s_mov_b64 exec, 1")
                A("buffer_atomic_add v31, v20, s[80:83], 0 offen sc1")
                A("s_mov_b64 exec, -1")
                A(f"{Ls}:")
            need(n)
            r = RING + 8 * (n % R)
            if kind == "g1":
                more = not (st == 1 and i == 19)
                if i == 0 and st == 0:
                    A("s_waitcnt lgkmcnt(6)")
                for t in range(7):
                    c = ACC + 8 * t
                    for rb in range(2):
                        srcc = "0" if i == 0 else v(c + 4 * rb, 4)
                        A(f"v_mfma_f32_16x16x32_bf16 {v(c+4*rb,4)}, {v(AF+4*t,4)}, {v(r+4*rb,4)}, {srcc}")
                        if rb == 0:
                            if more: A("s_waitcnt lgkmcnt(5)")
                            elif t < 6: A(f"s_waitcnt lgkmcnt({5-t})")
                            if t in (1, 3, 5, 6): slot()
                            if L == 0 and w2_rest and (t == 0 or (t == 4 and len(w2_rest) > 39 - n)):
                                w2q = vm.issue(w2_load(w2_rest.pop(0)))
                    if more:
                        rdA((i + 1) % 20, t)
                    if t in (0, 2, 4, 5): pre_slot()
            else:
                if n == 40 and L == 0:
                    assert not w2_rest
                    vm.wait(w2q)
                for t in range(5):
                    for rb in range(2):
                        c = ACC + 20 * rb + 4 * t
                        srcc = "0" if i == 0 else v(c, 4)
                        A(f"v_mfma_f32_16x16x32_bf16 {v(c,4)}, {w2reg(5*i+t)}, {v(r+4*rb,4)}, {srcc}")
                        if rb == 0 and t < 4: pre_slot()
                        if rb == 1 and t < 4: slot()
            last_of_phase = n + 1 in (20, 40, 54, 68)
            if last_of_phase:
                state["cur"] = n + 1
                ST({20: 5, 40: 7, 54: 9, 68: 11}[n + 1] + 16 * L)
                if n + 1 == 54:
                    check_flag(flq, "h", L, 1)
                    state["gate"] += 1
                    if L == 0: x1_load(1)
                    ST(14 + 16 * L)
                A.set_hook(slot, PACE if kind == "g1" else PACE // 2)
                if kind == "g1":
                    q = g1_epilogue(L, st)
                    pend_flag[n + 1 + 4] = (q, "h", L, st)
                elif st == 0:
                    g2_tail(L, 0)
                else:
                    if L == 0:
                        while slot(): pass
                        q = phase_E(0, seqs["sums"])
                        ST(12)

                        def mid():
                            vm.wait(q)
                            vm.issue(flag_store("x", 1, 0))
                        g2_tail(L, 1, mid)
                    else:
                        g2_tail(L, 1)
                    ST(13 + 16 * L)
                A.set_hook(None)
        assert not pend_flag and not Q
    Lfin = A.label("fin")
    A("s_or_b32 s51, s2, s3")
    A("s_cmp_lg_u32 s51, 0")
    A(f"s_cbranch_scc1 {Lfin}")
    dbg_srd()
    cnt = "buffer_load_dword v18, v20, s[80:83], 0 offen sc1"
    A(cnt)
    A("s_waitcnt vmcnt(0)")
    spin(lambda: A("v_cmp_ne_u32 vcc, 0x100, v18"), cnt)
    A(f"s_mov_b32 s55, {G.WS_EPOCH:#x}")
    A("s_mov_b64 exec, 1")
    A(f"buffer_store_dword v19, v20, {WS}, s55 offen sc1")
    A("s_mov_b64 exec, -1")
    A(f"{Lfin}:")
    ST.flush(2, 4)
    A(f"{Lend}:")
    A("s_endpgm")
    A.end_kernel(name, 512, 102, 256)
```

```python
from asmlib import v, a, s

CH_LDS = 25920
WS = "s[12:15]"


def conv_role(A, G, ST, q_loads, spin, epoch_load, poison):
    unpack = G.unpack
    F = G.FSH
    A.srd(76, 10, 11, G.SZ_SD)
    A.srd(80, 74, 75, G.SZ_SD)
    A("s_and_b32 s85, s84, 15")
    A("s_lshl_b32 s85, s85, 7")
    A("s_lshl_b32 s86, s28, 6")
    A("s_add_u32 s85, s85, s86")
    A("s_lshr_b32 s86, s84, 4")
    A("s_lshl_b32 s86, s86, 6")
    A("s_lshl_b32 s87, s29, 5")
    A("s_add_u32 s86, s86, s87")
    A("v_and_b32 v24, 0x38, v0")
    A("v_add_u32 v24, s85, v24")
    A("v_and_b32 v25, 7, v0")
    A("v_lshlrev_b32 v25, 2, v25")
    A("v_add_u32 v25, s86, v25")
    A("v_mul_u32_u24 v26, 1280, v24")
    A("v_lshl_add_u32 v26, v25, 1, v26")
    A("v_subrev_u32 v27, 5120, v26")
    A("s_movk_i32 s87, 5120")
    KR, VR, SR, KU, W, KV, VT_, O = 120, 144, 164, 172, 32, 220, 48, 120
    for r in range(4):
        A(f"buffer_load_dwordx2 {v(KR+2*r,2)}, v27, s[76:79], 0 offen offset:{1280*r}")
    A(f"buffer_load_dwordx2 {v(VR,2)}, v27, s[80:83], 0 offen offset:3840")
    for r in range(8):
        so = "0" if r < 4 else "s87"
        A(f"buffer_load_dwordx2 {v(KR+2*(r+4),2)}, v26, s[76:79], {so} offen offset:{1280*(r&3)}")
        A(f"buffer_load_dwordx2 {v(VR+2*(r+1),2)}, v26, s[80:83], {so} offen offset:{1280*(r&3)}")
    A.srd(76, 96, 97, 640 * 8)
    A("v_lshlrev_b32 v28, 3, v25")
    A(f"buffer_load_dwordx4 {v(SR,4)}, v28, s[76:79], 0 offen")
    A(f"buffer_load_dwordx4 {v(SR+4,4)}, v28, s[76:79], 0 offen offset:16")
    A("v_lshlrev_b32 v29, 13, v25")
    A("v_add_u32 v29, 4080, v29")
    A("v_lshlrev_b32 v30, 1, v24")
    A("v_sub_u32 v29, v29, v30")
    A("s_lshl_b32 s85, s84, 2")
    A("s_add_u32 s85, s85, s3")
    A(f"s_mul_i32 s86, s3, {CH_LDS}")
    A.srd(76, 64, 65, 640 * 4096)
    A.srd(80, 66, 67, 1280)
    A("s_lshl_b32 s87, s85, 12")
    A("s_lshl_b32 s88, s85, 13")
    A("s_lshl_b32 s89, s85, 1")
    HX = [56 + 16 * k for k in range(4)]
    VD = 52
    for k in range(4):
        A(f"buffer_load_dwordx4 {v(HX[k]+4,4)}, v2, s[76:79], s87 offen offset:{1024*k}")
    A(f"buffer_load_ushort v{VD}, v20, s[80:83], s89 offen")
    epoch_load()
    ST(16)
    A("s_waitcnt vmcnt(24)")
    for r in range(4):
        unpack(A, KU + 4 * r, KU + 4 * r + 1, KR + 2 * r)
        unpack(A, KU + 4 * r + 2, KU + 4 * r + 3, KR + 2 * r + 1)
    for r in range(8):
        A(f"s_waitcnt vmcnt({23 - 2*r})")
        ki = r + 4
        unpack(A, KU + 4 * ki, KU + 4 * ki + 1, KR + 2 * ki)
        unpack(A, KU + 4 * ki + 2, KU + 4 * ki + 3, KR + 2 * ki + 1)
    A("s_waitcnt vmcnt(6)")
    ST(17)
    for c in range(4):
        unpack(A, W + 0 + c, W + 4 + c, SR + 2 * c)
        unpack(A, W + 8 + c, W + 12 + c, SR + 2 * c + 1)
    KVR = lambda r: (KV + 4 * (r + 1)) if r < 7 else 164
    for r in range(-1, 8):
        unpack(A, VT_, VT_ + 1, VR + 2 * (r + 1))
        unpack(A, VT_ + 2, VT_ + 3, VR + 2 * (r + 1) + 1)
        for p in range(2):
            A(f"v_pk_mul_f32 {v(KVR(r)+2*p,2)}, {v(KU+4*(r+4-3)+2*p,2)}, {v(W+12+2*p,2)}")
        for j in (2, 1, 0):
            for p in range(2):
                d = KVR(r) + 2 * p
                A(f"v_pk_fma_f32 {v(d,2)}, {v(KU+4*(r+4-j)+2*p,2)}, {v(W+4*j+2*p,2)}, {v(d,2)}")
        for p in range(2):
            d = KVR(r) + 2 * p
            A(f"v_pk_mul_f32 {v(d,2)}, {v(d,2)}, {v(VT_+2*p,2)}")
    for c in range(4):
        for p in range(2):
            o = O + 4 * (2 * c + p)
            for i in range(4):
                rlo = 6 + p - 2 * i
                A(f"v_cvt_pk_bf16_f32 v{o+i}, v{KVR(rlo)+c}, v{KVR(rlo-1)+c}")
            A(f"s_mov_b32 s90, {G.WS_XR + (2*c+p)*4096:#x}")
            A(f"buffer_store_dwordx4 {v(o,4)}, v29, {WS}, s90 offen sc1")
    poison()
    ST(40)
    Z = 224
    for i in range(4):
        A(f"v_mov_b32 v{Z+i}, 0")
    A("v_and_b32 v24, 31, v0")
    A("v_min_u32 v24, 27, v24")
    A("v_lshlrev_b32 v24, 4, v24")
    A("v_lshrrev_b32 v25, 5, v0")
    A("v_mul_u32_u24 v25, 4640, v25")
    A("v_add3_u32 v24, v24, v25, s86")
    A(f"ds_write_b128 v24, {v(Z,4)} offset:{16640+4096}")
    A("v_and_b32 v24, 3, v0")
    A("v_mul_u32_u24 v24, 4160, v24")
    A("v_lshrrev_b32 v25, 2, v0")
    A("v_min_u32 v25, 2, v25")
    A("v_lshlrev_b32 v25, 4, v25")
    A("v_add3_u32 v25, v24, v25, s86")
    A(f"ds_write_b128 v25, {v(Z,4)}")
    VA, VB, VQ, VW = 220, 221, 21, 223
    A("v_bfe_u32 v25, v0, 2, 2")
    A(f"v_add_u32 v25, v25, v{VQ}")
    A("v_lshlrev_b32 v25, 4, v25")
    A(f"v_add3_u32 v{VA}, v24, v25, s86")
    A("v_and_b32 v24, 1, v0")
    A("v_mul_u32_u24 v24, 4640, v24")
    A("v_bfe_u32 v25, v0, 1, 3")
    A("v_lshlrev_b32 v25, 6, v25")
    A("v_sub_u32 v24, v24, v25")
    A(f"v_lshl_add_u32 v24, v{VQ}, 4, v24")
    A(f"v_add_u32 v24, {16640+448}, v24")
    A(f"v_add_u32 v{VB}, s86, v24")
    A(f"v_add_u32 v{VW}, s86, v2")
    VS, VT, VO = 228, 229, 230
    A(f"v_lshl_add_u32 v{VS}, v{VQ}, 4, v25")
    A("v_and_b32 v24, 1, v0")
    A(f"v_lshl_add_u32 v{VS}, v24, 3, v{VS}")
    A(f"v_add_u32 v{VS}, s86, v{VS}")
    A("v_bfe_u32 v24, v0, 2, 2")
    A(f"v_mul_u32_u24 v24, {CH_LDS}, v24")
    A(f"v_lshl_add_u32 v24, v{VQ}, 5, v24")
    A("v_and_b32 v25, 3, v0")
    A("v_lshl_add_u32 v24, v25, 3, v24")
    A("s_lshl_b32 s90, s3, 10")
    A(f"v_add_u32 v{VT}, s90, v24")
    A("v_lshlrev_b32 v24, 1, v25")
    A("v_bfe_u32 v25, v0, 2, 1")
    A("v_add_u32 v24, v24, v25")
    A("v_and_b32 v25, 8, v0")
    A("v_add_u32 v24, v24, v25")
    A("v_lshlrev_b32 v24, 3, v24")
    A(f"v_mul_u32_u24 v25, 20480, v{VQ}")
    A(f"v_add_u32 v{VO}, v24, v25")
    A(f"s_mul_i32 s91, s3, {32*20480}")
    A("s_lshl_b32 s90, s84, 7")
    A("s_add_u32 s91, s91, s90")
    A(f"s_add_u32 s91, s91, {G.WS_YF:#x}")
    A(f"v_lshl_add_u32 v24, v{VQ}, 2, v22")
    for i in range(3):
        A(f"v_mov_b32 v{HX[0]+8+i}, 0")
    for k in range(4):
        X, Y = HX[k], HX[k] + 8
        A(f"s_waitcnt vmcnt({15-k})")
        A(f"ds_write_b128 v{VW}, {v(X+4,4)} offset:{3*4160+48+1024*k}")
        for i in range(3):
            A(f"v_mov_b32_dpp v{Y+i}, v{X+5+i} wave_shr:1 row_mask:0xf bank_mask:0xf")
        for i in range(3):
            A(f"v_mov_b32 v{Y+3+i}, v{X+4+i}")
        if k < 3:
            for i in range(3):
                A(f"v_mov_b32_dpp v{HX[k+1]+8+i}, v{X+5+i} wave_ror:1 row_mask:0xf bank_mask:0xf")
        A(f"v_mov_b32 v{X+2}, v{Y+1}")
        A(f"v_mov_b32 v{X+3}, v{Y+2}")
        A(f"ds_write_b128 v{VW}, {v(Y,4)} offset:{0*4160+48+1024*k}")
        A(f"ds_write_b128 v{VW}, {v(Y+2,4)} offset:{2*4160+48+1024*k}")
        A(f"ds_write_b128 v{VW}, {v(X+2,4)} offset:{1*4160+48+1024*k}")
        if k == 1:
            A("s_waitcnt lgkmcnt(4)")
    AD = 216
    A("s_waitcnt vmcnt(10)")
    A("v_add_u32 v19, 1, v19")
    for i in range(4):
        A(f"v_cmp_eq_u32 vcc, {15-i}, v24")
        A("s_nop 1")
        A(f"v_cndmask_b32 v{AD+i}, 0, v{VD}, vcc")
    ACC = 184
    FA = [56, 120]; FB = [88, 152]
    ST(41)
    A("s_lshl_b32 s90, s84, 2")
    A("s_add_u32 s90, s90, s3")
    A(f"s_lshl_b32 s90, s90, {F}")
    A(f"s_add_u32 s90, s90, {G.WS_FK:#x}")
    A("s_waitcnt vmcnt(0)")
    A("s_mov_b64 exec, 1")
    A(f"buffer_store_dword v19, v20, {WS}, s90 offen sc1")
    A("s_mov_b64 exec, -1")
    A("s_lshr_b32 s90, s84, 4")
    A("s_lshl_b32 s90, s90, 6")
    A("s_bfe_u32 s85, s84, 0x10003")
    A("s_add_u32 s90, s90, s85")
    A(f"s_lshl_b32 s90, s90, {F}")
    A(f"s_add_u32 s90, s90, {G.WS_FK:#x}")
    A("v_lshlrev_b32 v24, 1, v12")
    fk = f"buffer_load_dword v18, v24, {WS}, s90 offen sc1"
    A(fk)
    A("s_waitcnt vmcnt(0)")
    spin(lambda: A("v_cmp_ne_u32 vcc, v19, v18"), fk)
    ST(18)
    for p in range(2):
        A(f"s_add_u32 m0, s86, {16640+4640*p}")
        A(f"s_add_u32 s90, s88, {G.WS_XR + 4096*p}")
        for i in range(4):
            A(f"buffer_load_dwordx4 v2, {WS}, s90 offen offset:{1024*i} sc1 lds")
    A("s_waitcnt vmcnt(0) lgkmcnt(0)")
    ST(42)
    q_loads()

    def rdA(buf, jp, i):
        A(f"ds_read_b128 {v(FA[buf]+4*i,4)}, v{VA} offset:{64*jp+512*i}")

    def rdB(buf, jp, d):
        A(f"ds_read_b128 {v(FB[buf]+4*d,4)}, v{VB} offset:{512*(7-d)+64*jp}")
    for i in range(8):
        rdB(0, 0, i)
    for i in range(7):
        rdA(0, 0, i)
    A("s_waitcnt lgkmcnt(7)")
    rdA(0, 0, 7)
    for nt in range(8):
        A(f"v_mfma_f32_16x16x32_bf16 {v(ACC+4*nt,4)}, {v(AD,4)}, {v(FB[0]+4*nt,4)}, 0")
    def jstep(b, jn, last=False):
        A("s_waitcnt lgkmcnt(0)")
        reads = []
        if not last:
            for i in range(8):
                reads.append(("A", i)); reads.append(("B", i))
        n = 0
        for i in range(8):
            for nt in range(i, 8):
                A(f"v_mfma_f32_16x16x32_bf16 {v(ACC+4*nt,4)}, {v(FA[b]+4*i,4)}, {v(FB[b]+4*(nt-i),4)}, {v(ACC+4*nt,4)}")
                n += 1
                if reads and n % 3 != 0:
                    if len(reads) == 1:
                        A("s_waitcnt lgkmcnt(8)")
                    kind, idx = reads.pop(0)
                    (rdA if kind == "A" else rdB)(1 - b, jn, idx)
                if last and nt == 7 and 3 <= i:
                    t = i - 3
                    A(f"v_cvt_pk_bf16_f32 v{56+2*t}, v{ACC+4*t}, v{ACC+4*t+1}")
                    A(f"v_cvt_pk_bf16_f32 v{56+2*t+1}, v{ACC+4*t+2}, v{ACC+4*t+3}")
                    A(f"ds_write_b64 v{VS}, {v(56+2*t,2)} offset:{512*t}")
        assert not reads
    Ll = A.label("convloop"); Lx = A.label("convlast")
    A("s_mov_b32 s90, 3")
    A(f"{Ll}:")
    jstep(0, 1)
    A("s_cmp_eq_u32 s90, 0")
    A(f"s_cbranch_scc1 {Lx}")
    jstep(1, 2)
    A(f"v_add_u32 v{VA}, 128, v{VA}")
    A(f"v_add_u32 v{VB}, 128, v{VB}")
    A("s_sub_u32 s90, s90, 1")
    A(f"s_branch {Ll}")
    A(f"{Lx}:")
    jstep(1, None, True)
    ST(43)
    for t in range(5, 8):
        if t == 7: A("s_nop 1")
        A(f"v_cvt_pk_bf16_f32 v{56+2*t}, v{ACC+4*t}, v{ACC+4*t+1}")
        A(f"v_cvt_pk_bf16_f32 v{56+2*t+1}, v{ACC+4*t+2}, v{ACC+4*t+3}")
        A(f"ds_write_b64 v{VS}, {v(56+2*t,2)} offset:{512*t}")
    A("s_waitcnt lgkmcnt(0)")
    A("s_barrier")
    YR = 72
    for i in range(8):
        A(f"ds_read_b64_tr_b16 {v(YR+2*i,2)}, v{VT} offset:{128*i}")
    for i in range(8):
        A(f"s_waitcnt lgkmcnt({7-i})")
        A(f"buffer_store_dwordx2 {v(YR+2*i,2)}, v{VO}, {WS}, s91 offen sc1")
        A(f"s_add_u32 s91, s91, {4*20480}")
    A("s_barrier")


def w1_role(A, G, ST, q_loads):
    A("s_and_b32 s85, s84, 1")
    A("s_lshr_b32 s86, s84, 1")
    A("s_cmp_ge_u32 s3, 2")
    A("s_cselect_b32 s76, s70, s68")
    A("s_cselect_b32 s77, s71, s69")
    A("s_cmp_ge_u32 s86, 27")
    A(f"s_cselect_b32 s78, 0, {640*3456:#x}")
    A("s_mov_b32 s79, 0x20000")
    A("v_lshrrev_b32 v24, 3, v0")
    A("v_mul_u32_u24 v24, 3456, v24")
    A("v_and_b32 v25, 7, v0")
    A("v_lshl_add_u32 v24, v25, 4, v24")
    A("s_lshl_b32 s87, s85, 1")
    A("s_add_u32 s87, s87, s29")
    A(f"s_mul_i32 s87, s87, {160*3456}")
    A("s_min_u32 s88, s86, 26")
    A("s_lshl_b32 s88, s88, 7")
    A("s_add_u32 s87, s87, s88")
    A("s_mul_i32 s88, s3, 20480")
    for i in range(20):
        A(f"s_add_u32 m0, s88, {1024*i}")
        A("s_nop 0")
        A("buffer_load_dwordx4 v24, s[76:79], s87 offen lds")
        A(f"s_add_u32 s87, s87, {8*3456}")
    ST(40)
    A("v_bfe_u32 v25, v0, 2, 2")
    A("v_lshl_add_u32 v25, v21, 3, v25")
    A("v_lshlrev_b32 v25, 7, v25")
    A("v_and_b32 v26, 1, v0")
    A("v_lshl_add_u32 v25, v26, 3, v25")
    A("v_bfe_u32 v26, v0, 1, 1")
    A("v_mul_u32_u24 v26, 40960, v26")
    A("s_lshl_b32 s87, s3, 5")
    A("v_add3_u32 v25, v25, v26, s87")
    for j in range(2):
        A("s_lshl_b32 s87, s86, 3")
        A("s_lshl_b32 s88, s3, 1")
        A("s_add_u32 s87, s87, s88")
        A(f"s_add_u32 s87, s87, {j}")
        A("s_mul_i32 s88, s87, 9363")
        A("s_lshr_b32 s88, s88, 16")
        A("s_mul_i32 s89, s88, 7")
        A("s_sub_u32 s87, s87, s89")
        A("s_mul_i32 s88, s88, 143360")
        A("s_lshl_b32 s87, s87, 10")
        A("s_add_u32 s87, s87, s88")
        A("s_mul_i32 s88, s85, 71680")
        A("s_add_u32 s87, s87, s88")
        A(f"s_add_u32 s{90+j}, s87, {G.WS_W1:#x}")
    A("s_waitcnt vmcnt(0)")
    A("s_barrier")
    ST(42)
    q_loads()
    F = 56
    for kp in range(5):
        for kk in range(2):
            for j in range(2):
                f = F + 16 * kp + 8 * kk + 4 * j
                off = 4096 * (2 * kp + kk) + 16 * j
                A(f"ds_read_b64_tr_b16 {v(f,2)}, v25 offset:{off}")
                A(f"ds_read_b64_tr_b16 {v(f+2,2)}, v25 offset:{off+512}")
        for kk in range(2):
            for j in range(2):
                f = F + 16 * kp + 8 * kk + 4 * j
                A(f"s_waitcnt lgkmcnt({6-4*kk-2*j})")
                A(f"buffer_store_dwordx4 {v(f,4)}, v2, {WS}, s{90+j} offen sc1")
                A(f"s_add_u32 s{90+j}, s{90+j}, 7168")


def w2_role(A, G, ST, q_loads):
    A("s_sub_u32 s86, s84, 56")
    A("s_and_b32 s85, s86, 3")
    A("s_lshr_b32 s86, s86, 2")
    A.srd(76, 72, 73, 1728 * 1280)
    A("v_mul_u32_u24 v24, 205, v0")
    A("v_lshrrev_b32 v24, 12, v24")
    A("v_mul_u32_u24 v25, 20, v24")
    A("v_sub_u32 v25, v0, v25")
    A("v_mul_u32_u24 v24, 1280, v24")
    A("v_lshl_add_u32 v24, v25, 4, v24")
    A(f"s_mul_i32 s87, s86, {224*1280}")
    A(f"s_mul_i32 s88, s3, {57*1280}")
    A("s_add_u32 s87, s87, s88")
    A("s_mul_i32 s88, s85, 320")
    A("s_add_u32 s87, s87, s88")
    A("v_add_u32 v24, s87, v24")
    A(f"s_mul_i32 s88, s3, {57*320}")
    for i in range(19):
        A(f"s_add_u32 m0, s88, {960*i}")
        A("s_nop 0")
        A("buffer_load_dwordx4 v24, s[76:79], 0 offen lds")
        A(f"v_add_u32 v24, {3*1280}, v24")
    ST(40)
    B0, B1, T = 200, 208, 216
    A(f"v_bfe_u32 v{T}, v0, 2, 2")
    A(f"v_and_b32 v{T+1}, 3, v0")
    A("s_mul_i32 s87, s28, 3")
    A("s_mul_i32 s88, s29, 160")
    for kk in range(4):
        A(f"s_add_u32 s89, s87, {kk}")
        A("s_lshl_b32 s89, s89, 2")
        A("v_add_u32 v24, s89, v21")
        A("v_mul_u32_u24 v25, 37, v24")
        A("v_lshrrev_b32 v25, 8, v25")
        A("v_mul_u32_u24 v26, 7, v25")
        A("v_sub_u32 v26, v24, v26")
        A("v_cmp_gt_u32 s[80:81], 4, v26")
        A("v_subrev_u32 v27, 4, v26")
        for hf in range(2):
            A(f"v_lshrrev_b32 v28, 1, v{T}")
            A(f"v_add_u32 v28, {2*hf}, v28")
            A("v_cmp_eq_u32 s[82:83], 3, v28")
            A("v_add_u32 v29, 4, v28")
            A("s_nop 0")
            A("v_cndmask_b32 v29, v29, v26, s[82:83]")
            A("v_cndmask_b32 v30, v27, 3, s[82:83]")
            A("v_cndmask_b32 v29, v29, v28, s[80:81]")
            A("v_cndmask_b32 v30, v30, v26, s[80:81]")
            A("v_mul_u32_u24 v31, 56, v25")
            A("v_lshl_add_u32 v31, v29, 3, v31")
            A("v_and_b32 v29, 1, v30")
            A("v_lshl_add_u32 v31, v29, 2, v31")
            A("v_and_b32 v30, 2, v30")
            A("v_add_u32 v31, v31, v30")
            A(f"v_and_b32 v29, 1, v{T}")
            A("v_add_u32 v31, v31, v29")
            A("v_mul_u32_u24 v31, 320, v31")
            A("v_add_u32 v31, s88, v31")
            A(f"v_lshl_add_u32 v{B0+2*kk+hf}, v{T+1}, 4, v31")
            A(f"v_lshl_add_u32 v{B1+2*kk+hf}, v{T+1}, 3, v31")
    A("s_lshl_b32 s89, s85, 1")
    A("s_add_u32 s89, s89, s29")
    A("s_mul_i32 s89, s89, 56")
    A("s_mul_i32 s90, s86, 7")
    A("s_add_u32 s89, s89, s90")
    A("s_add_u32 s89, s89, s87")
    A("s_mul_i32 s89, s89, 5120")
    A(f"s_add_u32 s89, s89, {G.WS_W2:#x}")
    A("v_add_u32 v24, 4096, v2")
    A("s_waitcnt vmcnt(0)")
    A("s_barrier")
    ST(42)
    q_loads()
    F = 56
    for kk in range(4):
        for t in range(5):
            f = F + 20 * kk + 4 * t
            ab = B0 if t < 4 else B1
            off = 64 * (t >> 1) + 8 * (t & 1) if t < 4 else 128
            A(f"ds_read_b64_tr_b16 {v(f,2)}, v{ab+2*kk} offset:{off}")
            A(f"ds_read_b64_tr_b16 {v(f+2,2)}, v{ab+2*kk+1} offset:{off}")
        for t in range(5):
            f = F + 20 * kk + 4 * t
            A(f"s_waitcnt lgkmcnt({8-2*t})")
            if t < 4:
                A(f"buffer_store_dwordx4 {v(f,4)}, v2, {WS}, s89 offen offset:{1024*t} sc1")
            else:
                A(f"buffer_store_dwordx4 {v(f,4)}, v24, {WS}, s89 offen sc1")
        A("s_add_u32 s89, s89, 5120")
```

```python
import sys, os
from asmlib import Asm, v, a, s

NAME = "interleave_layers__ssm_conv_h3__glu_gated_bilinear__prompt"
SZ_SD = 2048 * 640 * 2
WS_XR = 0x0000000; SZ_XR = 640 * 2 * 4096
WS_YF = 0x0500000
WS_X1 = 0x0780000
WS_XN = 0x0A00000
WS_W1 = 0x0F00000; SZ_W1 = 32 * 143360
WS_W2 = 0x1360000; SZ_W2 = 8 * 56 * 5 * 1024
WS_SUM = 0x1590000; SZ_SUM = 128 * 8192
FSH = int(os.environ.get("FSH", "7"))
SZ_FL = 2 * 64 * 32 << FSH
WS_FX = 0x1690000
WS_FH = WS_FX + SZ_FL
WS_FY = WS_FH + SZ_FL
WS_FW = WS_FY + (640 << FSH)
WS_FK = WS_FW + (128 << FSH)
WS_EPOCH = WS_FK + (640 << FSH)
assert WS_EPOCH + 128 <= 0x17D0000
LIST = int(os.environ.get("LIST", "0"))
WS_HF = 0x17D0000; SZ_HF = 64 * 114688
WS_END = WS_HF + 2 * SZ_HF
assert WS_W1 + SZ_W1 <= WS_W2 and WS_W2 + SZ_W2 <= WS_SUM and WS_SUM + SZ_SUM <= WS_FX
EPS = 0x3727c5ac
INV640 = 0x3acccccd

STAMPS = bool(int(os.environ.get("STAMPS", "0")))
WS_DBG = 0x3000000


class Stamps:
    def __init__(self, A, vreg):
        self.A = A; self.v = vreg; self.prev = None

    def init(self):
        if not STAMPS: return
        A = self.A
        A(f"v_mov_b32 v{self.v}, 0")
        A("s_memrealtime s[98:99]")
        A("s_waitcnt lgkmcnt(0)")
        A(f"v_writelane_b32 v{self.v}, s98, 62")
        self.prev = None
        self(0)

    def __call__(self, i):
        if not STAMPS: return
        A = self.A
        if self.prev is not None:
            A(f"v_writelane_b32 v{self.v}, s98, {self.prev}")
        A("s_memtime s[98:99]")
        self.prev = i

    def val(self, i, sreg):
        if not STAMPS: return
        self.A(f"v_writelane_b32 v{self.v}, s{sreg}, {i}")

    def sync(self):
        if not STAMPS: return
        if self.prev is not None:
            self.A("s_waitcnt lgkmcnt(0)")
            self.A(f"v_writelane_b32 v{self.v}, s98, {self.prev}")
        self.prev = None

    def flush(self, slot, wsreg):
        if not STAMPS: return
        A = self.A
        self(61)
        self.sync()
        A("s_memrealtime s[98:99]")
        A("s_waitcnt lgkmcnt(0)")
        A(f"v_writelane_b32 v{self.v}, s98, 63")
        A("s_mov_b64 exec, -1")
        A.srd(92, wsreg, wsreg + 1, 0x1000000, WS_DBG)
        A("s_lshl_b32 s100, s2, 10")
        A("s_lshl_b32 s101, s3, 8")
        A("s_add_u32 s100, s100, s101")
        A(f"s_add_u32 s100, s100, {slot*0x100000}")
        A("v_mbcnt_lo_u32_b32 v1, -1, 0")
        A("v_mbcnt_hi_u32_b32 v1, -1, v1")
        A("v_lshlrev_b32 v1, 2, v1")
        A(f"buffer_store_dword v{self.v}, v1, s[92:95], s100 offen")


class VM:
    def __init__(self, A):
        self.A = A; self.n = 0; self.done = 0

    def issue(self, text):
        if self.n - self.done >= 62:
            self.wait(self.n - 40)
        q = self.n
        self.n += 1
        self.A(text)
        return q

    def wait(self, seq):
        if seq < self.done: return
        self.done = seq + 1
        self.A(f"s_waitcnt vmcnt({self.n - 1 - seq})")

    def wait_all(self):
        self.done = self.n
        self.A("s_waitcnt vmcnt(0)")


def lane_wave(A, sw=3):
    A("v_lshrrev_b32 v1, 6, v0")
    A("v_and_b32 v0, 63, v0")
    A(f"v_readfirstlane_b32 s{sw}, v1")


def unpack(A, dlo, dhi, src):
    A(f"v_lshlrev_b32 v{dlo}, 16, v{src}")
    A(f"v_and_b32 v{dhi}, 0xffff0000, v{src}")


def round_bf16(A, d, x):
    A(f"v_cvt_pk_bf16_f32 v{d}, v{x}, v{x}")
    A(f"v_lshlrev_b32 v{d}, 16, v{d}")


def ln_stats(A, vsum, vsq, vm, vr, t):
    A(f"v_mul_f32 v{vsum}, {INV640:#x}, v{vsum}")
    A(f"v_mul_f32 v{vsq}, {INV640:#x}, v{vsq}")
    A(f"v_fma_f32 v{vsq}, -v{vsum}, v{vsum}, v{vsq}")
    A(f"v_max_f32 v{vsq}, 0, v{vsq}")
    round_bf16(A, vm, vsum)
    round_bf16(A, t, vsq)
    A(f"v_add_f32 v{t}, {EPS:#x}, v{t}")
    round_bf16(A, t, t)
    A(f"v_sqrt_f32 v{t}, v{t}")
    A("s_nop 0")
    round_bf16(A, t, t)
    A(f"v_rcp_f32 v{vr}, v{t}")
    A("s_nop 0")


def swap_add(A, x, t, which):
    A(f"v_mov_b32 v{t}, v{x}")
    A("s_nop 1")
    A(f"v_permlane{which}_swap_b32 v{x}, v{t}")
    A(f"v_add_f32 v{x}, v{x}, v{t}")


from ffn import k_ffn


def main():
    A = Asm()
    k_ffn(A, sys.modules[__name__])
    hdr = "; generated by gen/gen.py - H3 long conv (Toeplitz MFMA) + bilinear GLU, two layers"
    out = sys.argv[1] if len(sys.argv) > 1 else f"cdna_kernels/{NAME}.s"
    open(out, "w").write(A.text(hdr))


if __name__ == "__main__":
    main()
```

```python
import os
from asmlib import v, a, s
import front
from front import PQ, POUT, PDBG, sT, SA, RA

env = lambda k, d: int(os.environ.get(k, str(d)))
G1MAP = env("G1MAP", 2)
G2MAP = env("G2MAP", 0)
HTOUCH = env("HTOUCH", 0)
CODEPF = env("CODEPF", 1)
NW2C = 0 * env("NW2C", 0)
W2PRE = env("W2PRE", 30)
QFIRST = env("QFIRST", 1)
PACE = env("PACE", 12)
FILL0 = env("FILL0", 4)
TOUCH = env("TOUCH", 1)
R = 10
W2V, RING, ACC, AF, XS, YS = 32, 56, 136, 192, 220, 232
BANK = [176, 136]
RED = 143360
RB_XN = 40960
RB_HF = 114688
WS = "s[12:15]"
YU = [22, 24, 26, 28, 30, 248]
EF = [250, 252]


class Side:
    def __init__(self, A, vm, direct):
        self.A = A; self.vm = vm; self.direct = direct; self.items = []

    def _add(self, fn, w):
        if self.direct: fn()
        else: self.items.append((fn, w))

    def __call__(self, text):
        w = sum(2 if ln.strip().startswith("v_pk_") else 1 for ln in text.split("\n"))
        self._add(lambda: self.A(text), w)

    def issue(self, text):
        box = []
        self._add(lambda: box.append(self.vm.issue(text)), 2)
        return box

    def wait(self, box):
        self._add(lambda: self.vm.wait(box[0]), 1)

    def atom(self, fn, w=2):
        self._add(fn, w)

    def mark(self, step):
        if not self.direct: self.items.append((step, None))

    def pump(self, budget, step):
        while self.items and budget > 0:
            fn, w = self.items[0]
            if w is None:
                if step < fn: return
                self.items.pop(0); continue
            self.items.pop(0)
            fn(); budget -= w

    def flush(self):
        self.pump(1 << 30, 1 << 30)


def k_ffn(A, G):
    unpack, ln_stats = G.unpack, G.ln_stats
    F = G.FSH
    name = G.NAME + "_kernel"
    A.launches.append(f"; @launch {'kernel=' + name + ' ' if G.LIST else ''}grid=(256,1,1) block=(256,1,1) lds=163840")
    A.begin_kernel(name)
    ST = G.Stamps(A, 255)
    Lend = A.label("end")
    A("s_cmp_ge_u32 s2, 256")
    A(f"s_cbranch_scc1 {Lend}")
    A("s_load_dwordx16 s[64:79], s[0:1], 0")
    A("s_load_dwordx8 s[80:87], s[0:1], 64")
    A("s_load_dwordx2 s[4:5], s[0:1], 96")
    ST.init()
    ST.sync()
    G.lane_wave(A)
    A("s_and_b32 s45, s2, 7")
    A("s_lshr_b32 s47, s2, 3")
    A("s_lshr_b32 s28, s3, 1")
    A("s_and_b32 s29, s3, 1")

    class C: pass

    def wait_args():
        A("s_waitcnt lgkmcnt(0)")
        A.srd(12, 4, 5, G.WS_END)

    def setup():
        A.srd(16, PQ, PQ + 1, G.SZ_SD)
        A.srd(20, POUT, POUT + 1, G.SZ_SD)
        if G2MAP == 0:
            A("s_mov_b32 s24, s45")
            A("s_mov_b32 s58, s47")
        else:
            A("s_and_b32 s24, s45, 6")
            A("s_lshr_b32 s51, s47, 4")
            A("s_add_u32 s24, s24, s51")
            A("s_bfe_u32 s58, s47, 0x20002")
            A("s_lshl_b32 s58, s58, 1")
            A("s_and_b32 s51, s45, 1")
            A("s_add_u32 s58, s58, s51")
            A("s_lshl_b32 s58, s58, 2")
            A("s_and_b32 s51, s47, 3")
            A("s_add_u32 s58, s58, s51")
        A("s_and_b32 s26, s58, 7")
        A("s_lshr_b32 s27, s58, 3")
        A("s_xor_b32 s39, s29, s58")
        A("s_and_b32 s39, s39, 1")
        m = G1MAP
        A(f"s_lshr_b32 s59, s45, {m}")
        A(f"s_lshl_b32 s59, s59, {m}")
        A(f"s_lshr_b32 s51, s47, {5-m}")
        A("s_add_u32 s59, s59, s51")
        A(f"s_and_b32 s25, s45, {(1<<m)-1}")
        A(f"s_lshl_b32 s25, s25, {5-m}")
        A(f"s_and_b32 s51, s47, {(32>>m)-1}")
        A("s_add_u32 s25, s25, s51")
        A("s_lshl_b32 s51, s59, 3")
        A("s_add_u32 s52, s51, s3")
        A("s_lshl_b32 s51, s24, 3")
        A("s_add_u32 s53, s51, s27")
        A(f"s_mul_i32 s30, s52, {RB_XN}")
        A(f"s_mul_i32 s32, s53, {RB_HF}")
        A(f"s_mul_i32 s51, s3, {14*2048}")
        A("s_add_u32 s32, s32, s51")
        A(f"s_mul_i32 s34, s52, {RB_HF}")
        A(f"s_mul_i32 s36, s53, {RB_XN}")
        A("s_lshl_b32 s51, s39, 10")
        A("s_add_u32 s36, s36, s51")
        A("s_lshl_b32 s38, s53, 1")
        A("s_add_u32 s38, s38, s39")
        A("s_lshl_b32 s48, s38, 13")
        A("s_lshl_b32 s51, s26, 1")
        A("s_add_u32 s51, s51, s28")
        A("s_lshl_b32 s51, s51, 9")
        A("s_add_u32 s49, s48, s51")
        A(f"s_mul_i32 s38, s38, {16*1280}")
        A("s_mov_b32 s35, s38")
        A("s_mul_i32 s51, s26, 160")
        A("s_add_u32 s38, s38, s51")
        A(f"s_lshl_b32 s40, s52, {5+F}")
        A(f"s_lshl_b32 s42, s53, {5+F}")
        A(f"s_lshl_b32 s51, s26, {F}")
        A("s_add_u32 s42, s42, s51")
        A(f"s_lshl_b32 s44, s53, {5+F}")
        A(f"s_lshl_b32 s51, s3, {3+F}")
        A("s_add_u32 s44, s44, s51")
        A(f"s_lshl_b32 s46, s52, {5+F}")
        A(f"s_lshl_b32 s51, s25, {F}")
        A("s_add_u32 s46, s46, s51")
        A("s_mov_b32 s50, 100000")
        A("s_cmp_eq_u32 s28, 0")
        A("s_cselect_b32 s56, -1, 0")
        A("s_cselect_b32 s57, 0, -1")
        A("v_lshlrev_b32 v2, 4, v0")
        A("v_add_u32 v3, 0x10000, v2")
        A("v_add_u32 v4, 0x20000, v2")
        A("s_lshl_b32 s51, s39, 10")
        A("v_add_u32 v5, s51, v2")
        A("v_xor_b32 v6, 1024, v5")
        A("v_lshrrev_b32 v21, 4, v0")
        A("v_and_b32 v22, 15, v0")
        A("v_lshlrev_b32 v23, 4, v22")

        def piece_off(dst):
            A("v_lshrrev_b32 v24, 2, v25")
            A(f"v_lshl_add_u32 v{dst}, v24, 11, v23")
            A("v_and_b32 v24, 3, v25")
            A(f"v_lshl_add_u32 v{dst}, v24, 8, v{dst}")
        A("s_mul_i32 s51, s25, 7")
        A("v_add_u32 v25, s51, v21")
        piece_off(7)
        A("s_mul_i32 s51, s26, 10")
        A("s_lshl_b32 s54, s28, 2")
        A("s_add_u32 s54, s54, s51")
        A("v_add_u32 v25, s54, v21")
        piece_off(8)
        A("s_add_u32 s51, s51, 8")
        A("v_lshrrev_b32 v25, 1, v21")
        A("v_add_u32 v25, s51, v25")
        piece_off(9)
        A("v_and_b32 v24, 1, v21")
        A("v_lshl_add_u32 v9, v24, 3, v9")
        A("v_mul_u32_u24 v24, 1280, v22")
        A("v_lshl_add_u32 v10, v21, 4, v24")
        A("s_lshl_b32 s51, s28, 6")
        A("v_add_u32 v10, s51, v10")
        A("v_lshl_add_u32 v11, v21, 3, v24")
        A("v_add_u32 v11, 128, v11")
        A("v_and_b32 v12, 31, v0")
        A(f"v_lshlrev_b32 v12, {F}, v12")
        A("v_and_b32 v13, 7, v0")
        A(f"v_lshlrev_b32 v13, {F}, v13")
        A("v_lshlrev_b32 v14, 5, v22")
        A("v_lshl_add_u32 v14, v21, 3, v14")
        for reg, x in ((15, 0), (16, 1), (17, 2), (1, 3)):
            A(f"s_xor_b32 s51, s3, {x}")
            A("s_mul_i32 s51, s51, 5120")
            A(f"s_add_u32 s51, s51, {RED}")
            A(f"v_add_u32 v{reg}, s51, v2")
        A("v_mov_b32 v20, 0")
        A("v_and_b32 v24, 3, v0")
        A("v_lshrrev_b32 v25, 2, v0")
        A("v_mul_u32_u24 v252, 1280, v24")
        A("v_lshl_add_u32 v252, v25, 4, v252")
        A("s_lshl_b32 s62, s24, 8")
        A("s_lshl_b32 s54, s29, 7")
        A("s_add_u32 s62, s62, s54")
        A("s_lshl_b32 s54, s58, 2")
        A("s_add_u32 s62, s62, s54")
        A("s_mul_i32 s62, s62, 1280")
        A("s_mul_i32 s60, s26, 56")
        A("s_mul_i32 s54, s3, 14")
        A("s_add_u32 s60, s60, s54")
        A("s_mul_i32 s60, s60, 5120")
        A(f"s_add_u32 s60, s60, {G.WS_W2:#x}")
        A(f"s_lshl_b32 s37, s26, {F}")
        A(f"s_add_u32 s37, s37, {G.WS_FW:#x}")

    def epoch_load():
        A(f"s_mov_b32 s55, {G.WS_EPOCH:#x}")
        A(f"buffer_load_dword v19, v20, {WS}, s55 offen sc1")

    def poison():
        A("v_mov_b32 v30, -1")
        A("v_mov_b32 v31, -1")
        for st in range(2):
            A(f"s_add_u32 s55, s49, {G.WS_SUM + st*8*8192:#x}")
            A(f"buffer_store_dwordx2 v[30:31], v14, {WS}, s55 offen sc1")

    def spin(test, reload):
        Lc = A.label("chk"); Lo = A.label("ok")
        saved = A.hook
        A.hook = None
        A(f"{Lc}:")
        test()
        A(f"s_cbranch_vccz {Lo}")
        A("s_cmp_eq_u32 s50, 0")
        A(f"s_cbranch_scc1 {Lo}")
        A("s_sub_u32 s50, s50, 1")
        A("s_sleep 1")
        A("s_mov_b64 exec, vcc")
        A(reload)
        A("s_mov_b64 exec, -1")
        A("s_waitcnt vmcnt(0)")
        A(f"s_branch {Lc}")
        A(f"{Lo}:")
        ST.val(44 + spin.n, 50)
        spin.n += 1
        A.hook = saved
    spin.n = 0
    tok_test = lambda: A("v_cmp_ne_u32 vcc, v19, v18")

    T, TY, X, Y = 32, 76, 96, 136

    def q_loads():
        for i in range(5):
            A(f"buffer_load_dwordx4 {v(T+4*i,4)}, v252, s[16:19], s62 offen offset:{256*i}")
    C.wait_args, C.setup, C.epoch_load, C.poison, C.spin, C.q_loads = wait_args, setup, epoch_load, poison, spin, q_loads

    def w2reg(n):
        return a(4 * n, 4) if n < 64 else v(W2V + 4 * (n - 64), 4)

    def w2_addr():
        A("s_lshl_b32 s54, s28, 11")
        A("v_add_u32 v244, s54, v2")
        A("v_xor_b32 v245, 2048, v244")
        A("v_add_u32 v246, 4096, v2")
        A("v_lshlrev_b32 v247, 3, v13")
    fw2 = f"buffer_load_dword v18, v247, {WS}, s37 offen sc1"

    def rot_tables():
        if G2MAP == 0:
            A("s_lshl_b32 s51, s27, 1")
            A("s_add_u32 s51, s51, s26")
        else:
            A("s_and_b32 s51, s47, 3")
            A("s_lshl_b32 s51, s51, 1")
            A("s_lshr_b32 s54, s47, 2")
            A("s_add_u32 s51, s51, s54")
        A("s_cmp_ge_u32 s51, 7")
        A("s_cselect_b32 s54, 7, 0")
        A("s_sub_u32 s51, s51, s54")
        for j in range(7):
            A("s_lshl_b32 s54, s51, 12")
            A(f"s_add_u32 s{64+j}, s32, s54")
            A("s_mul_i32 s54, s51, 10240")
            A(f"s_add_u32 s{71+j}, s60, s54")
            A("s_add_u32 s51, s51, 1")
            A("s_cmp_eq_u32 s51, 7")
            A("s_cselect_b32 s51, 0, s51")

    def w2_load(n):
        i, sl = divmod(n, 5)
        vo = ("v244", "v244", "v245", "v245", "v246")[sl]
        off = (0, 1024, 0, 1024, 0)[sl]
        sreg = 71 + i // 2
        txt = f"buffer_load_dwordx4 {w2reg(n)}, {vo}, {WS}, s{sreg} offen offset:{off} sc1"
        if sl == 4 and i % 2 == 0:
            txt += f"\ns_add_u32 s{sreg}, s{sreg}, 5120"
        return txt

    def own_flag():
        A("s_mov_b64 exec, 1")
        A(f"buffer_store_dword v19, v20, {WS}, s63 offen sc1")
        A("s_mov_b64 exec, -1")

    Lhelp, Lw2r, Lhdone, Lidle, Ljoin, Ldma, Lgo, Lhw1 = [A.label(x) for x in ("help", "w2role", "hdone", "idle", "join", "dma", "go", "hw1")]
    C.own_flag = own_flag
    C.w2_addr, C.rot_tables, C.w2_load, C.fw2, C.NW2C, C.W2GAP = w2_addr, rot_tables, w2_load, fw2, NW2C, env("W2GAP", 5)
    A("s_cmp_ge_u32 s47, 20")
    A(f"s_cbranch_scc1 {Lhelp}")
    A(f"s_mul_i32 s{sT}, s45, 20")
    A(f"s_add_u32 s{sT}, s{sT}, s47")
    front.conv_role(A, G, ST, C)
    ST(38)
    A("s_mul_i32 s63, s3, 160")
    A(f"s_add_u32 s63, s63, s{sT}")
    A(f"s_lshl_b32 s63, s63, {F}")
    A(f"s_add_u32 s63, s63, {G.WS_FY:#x}")
    A("s_waitcnt vmcnt(0)")
    own_flag()
    ST(39)
    ST.sync()
    A(f"s_branch {Ljoin}")
    A(f"{Lhelp}:")
    A(f"s_sub_u32 s{sT}, s47, 20")
    A(f"s_lshl_b32 s{sT}, s{sT}, 3")
    A(f"s_add_u32 s{sT}, s{sT}, s45")
    wait_args()
    if env("HPRE", 1):
        A.srd(RA, front.PH, front.PH + 1, 640 * 4096)
        A("s_sub_u32 s51, s47, 20")
        A("s_lshl_b32 s51, s51, 2")
        A("s_add_u32 s51, s51, s3")
        A("s_min_u32 s51, s51, 39")
        A("s_lshl_b32 s51, s51, 13")
        A(f"s_mul_i32 s54, s45, {80*4096}")
        A("s_add_u32 s51, s51, s54")
        A("v_lshlrev_b32 v24, 7, v0")
        A(f"buffer_load_dword v254, v24, {SA}, s51 offen")
    setup()
    epoch_load()
    q_loads()
    poison()
    A(f"s_cmp_ge_u32 s{sT}, 88")
    A(f"s_cbranch_scc1 {Lidle}")
    A(f"s_waitcnt vmcnt({2 if QFIRST else 7})")
    A("v_add_u32 v19, 1, v19")

    def wg_flag(sreg, base):
        Lnf = A.label("noflag")
        A("s_barrier")
        A("s_cmp_lg_u32 s3, 0")
        A(f"s_cbranch_scc1 {Lnf}")
        A(f"s_lshl_b32 s63, s{sreg}, {F}")
        A(f"s_add_u32 s63, s63, {G.WS_FW + (base << F):#x}")
        own_flag()
        A(f"{Lnf}:")
    A(f"s_cmp_ge_u32 s{sT}, 64")
    A(f"s_cbranch_scc1 {Lw2r}")
    front.w2_issue(A, G, sT)
    front.w1_issue(A, G, sT, 40960)
    ST(40)
    front.w2_addrs(A, G, sT)
    A("s_waitcnt vmcnt(10)")
    A("s_barrier")
    ST(42)
    front.w2_process(A, G, 56)
    A("s_waitcnt vmcnt(10)")
    A("s_barrier")
    front.w1_process(A, G, sT, 40960, 96)
    A("s_waitcnt vmcnt(10)")
    wg_flag(sT, 0)
    ST(43)
    ST.sync()
    A(f"s_branch {Lhw1}")
    A(f"{Lw2r}:")
    A(f"s_lshl_b32 s41, s{sT}, 1")
    A("s_sub_u32 s41, s41, 64")
    A(f"s_add_u32 s{sT}, s41, 1")
    front.w1_issue(A, G, 41, 0)
    front.w1_issue(A, G, sT, 40960)
    ST(40)
    A("s_waitcnt vmcnt(10)")
    A("s_barrier")
    ST(42)
    front.w1_process(A, G, 41, 0, 56)
    A("s_waitcnt vmcnt(10)")
    A("s_barrier")
    front.w1_process(A, G, sT, 40960, 96)
    A("s_waitcnt vmcnt(10)")
    wg_flag(41, 64)
    ST(43)
    ST.sync()
    A(f"{Lhw1}:")
    A("s_waitcnt vmcnt(0)")
    wg_flag(sT, 64)
    A(f"s_branch {Lhdone}")
    A(f"{Lidle}:")
    if CODEPF:
        Lpc = A.label("pc")
        A(f"s_getpc_b64 s[{RA}:{RA+1}]")
        A(f"{Lpc}:")
        A(f"s_sub_u32 s{RA}, s{RA}, {Lpc}-{name}")
        A(f"s_subb_u32 s{RA+1}, s{RA+1}, 0")
        A(f"s_mov_b32 s{RA+2}, {Lend}-{name}")
        A(f"s_mov_b32 s{RA+3}, 0x20000")
        A("s_lshl_b32 s51, s3, 13")
        A("v_lshlrev_b32 v24, 7, v0")
        for i in range(2):
            A(f"buffer_load_dword v{56+i}, v24, {SA}, s51 offen")
            A("s_add_u32 s51, s51, 0x8000")
    if env("PGT", 0):
        A(f"v_lshlrev_b32 v24, {env('PGS', 17)}, v0")
        A(f"s_lshl_b32 s51, s3, {env('PGS', 17)+6}")
        for i in range(5 << (17 - env('PGS', 17)) >> 2 | 1):
            A(f"buffer_load_dword v58, v24, {WS}, s51 offen")
            A(f"s_add_u32 s51, s51, {1 << (env('PGS', 17)+8):#x}")
        A(f"buffer_load_dword v58, v24, {WS}, s51 offen")
        A("buffer_load_dword v59, v24, s[20:23], 0 offen")
    A("s_waitcnt vmcnt(0)")
    A("v_add_u32 v19, 1, v19")
    A("s_barrier")
    A(f"{Lhdone}:")
    ST(38)
    w2_addr()
    rot_tables()
    ST(39)
    ST.sync()
    A(f"{Ljoin}:")
    A("s_mul_i32 s51, s25, 7")
    A("s_add_u32 s54, s51, 6")
    A("s_lshr_b32 s51, s51, 3")
    A("s_lshr_b32 s54, s54, 3")
    A("s_sub_u32 s54, s54, s51")
    A("v_and_b32 v24, 1, v0")
    A("v_mul_u32_u24 v24, s54, v24")
    A(f"v_lshlrev_b32 v24, {F+2}, v24")
    A("s_lshl_b32 s51, s51, 2")
    A("s_add_u32 s51, s51, s3")
    A(f"s_lshl_b32 s55, s51, {F}")
    A(f"s_add_u32 s55, s55, {G.WS_FW + (64 << F):#x}")
    fw = f"buffer_load_dword v18, v24, {WS}, s55 offen sc1"
    A(fw)
    A("s_mul_i32 s51, s25, 143360")
    A("s_mul_i32 s54, s3, 35840")
    A(f"s_add_u32 s52, s51, {G.WS_W1:#x}")
    A(f"s_lshr_b32 s51, s47, {5-G1MAP}")
    A("s_mul_i32 s51, s51, 5")
    A(f"s_lshr_b32 s51, s51, {G1MAP}")
    A("s_mul_i32 s51, s51, 7168")
    A("s_add_u32 s51, s51, s54")
    A("s_add_u32 s61, s54, 35840")
    A("s_waitcnt vmcnt(0)")
    spin(tok_test, fw)
    ST(28)
    for i in range(5):
        A("s_mov_b32 m0, s51")
        A("s_add_u32 s55, s52, s51")
        for j in range(7):
            if j == 4:
                A("s_add_u32 m0, s51, 4096")
                A("s_add_u32 s55, s55, 4096")
            A(f"buffer_load_dwordx4 v2, {WS}, s55 offen offset:{1024*(j&3)} sc1 lds")
        A("s_add_u32 s51, s51, 7168")
        A("s_cmp_eq_u32 s51, s61")
        A("s_cselect_b32 s51, s54, s51")
    ST(60)
    ST.sync()
    A("s_cmp_ge_u32 s3, 2")
    A(f"s_cbranch_scc1 {Ldma}")

    A("v_and_b32 v24, 3, v0")
    A("v_lshrrev_b32 v25, 2, v0")
    A("v_lshlrev_b32 v26, 8, v25")
    A("v_lshl_add_u32 v26, v24, 3, v26")
    A("v_lshrrev_b32 v27, 2, v25")
    A("v_lshlrev_b32 v27, 11, v27")
    A("v_and_b32 v28, 3, v25")
    A("v_lshl_add_u32 v27, v28, 8, v27")
    A("v_lshl_add_u32 v27, v24, 4, v27")
    A("s_lshl_b32 s54, s3, 2")
    A("s_add_u32 s54, s54, s53")
    A(f"s_mul_i32 s54, s54, {RB_XN}")
    A("s_bfe_u32 s55, s58, 0x10002")
    A("s_mul_i32 s51, s55, 20480")
    A("s_add_u32 s51, s51, s54")
    A("s_lshl_b32 s55, s55, 10")
    A("s_add_u32 s54, s54, s55")
    A("s_and_b32 s55, s58, 3")
    A("s_lshl_b32 s55, s55, 5")
    A("s_add_u32 s51, s51, s55")
    A("s_lshl_b32 s55, s55, 1")
    A("s_add_u32 s54, s54, s55")
    S = 176

    def row_stats():
        A(f"v_add_f32 v{S}, v{S}, v{S+1}")
        A(f"v_add_f32 v{S+2}, v{S+2}, v{S+3}")
        A("s_nop 1")
        for ror in (4, 8):
            A(f"v_add_f32_dpp v{S}, v{S}, v{S} row_ror:{ror} row_mask:0xf bank_mask:0xf")
            A(f"v_add_f32_dpp v{S+2}, v{S+2}, v{S+2} row_ror:{ror} row_mask:0xf bank_mask:0xf")
            A("s_nop 0" if ror == 4 else f"v_mov_b32 v{S+1}, v{S}")
        for w in (16, 32):
            if w == 32: A(f"v_mov_b32 v{S+1}, v{S}")
            A(f"v_mov_b32 v{S+3}, v{S+2}")
            A("s_nop 0")
            A(f"v_permlane{w}_swap_b32 v{S}, v{S+1}")
            A(f"v_permlane{w}_swap_b32 v{S+2}, v{S+3}")
            A(f"v_add_f32 v{S}, v{S}, v{S+1}")
            A(f"v_add_f32 v{S+2}, v{S+2}, v{S+3}")
        ln_stats(A, S, S + 2, S + 4, S + 6, S + 1)
        A(f"v_mul_f32 v{S+4}, -v{S+4}, v{S+6}")
        A(f"v_mov_b32 v{S+7}, v{S+6}")
        A(f"v_mov_b32 v{S+5}, v{S+4}")

    def acc_stats(x, first):
        if first:
            A(f"v_mov_b32 v{S}, v{x}\nv_mov_b32 v{S+1}, v{x+1}")
            A(f"v_pk_mul_f32 {v(S+2,2)}, {v(x,2)}, {v(x,2)}")
        else:
            A(f"v_pk_add_f32 {v(S,2)}, {v(S,2)}, {v(x,2)}")
            A(f"v_pk_fma_f32 {v(S+2,2)}, {v(x,2)}, {v(x,2)}, {v(S+2,2)}")
    for i in range(20):
        unpack(A, X + 2 * i, X + 2 * i + 1, T + i)
        acc_stats(X + 2 * i, i == 0)
    for j in range(3):
        A(f"v_add_u32 v{188+j}, {64*j}, v0")
        A(f"v_min_u32 v{188+j}, 159, v{188+j}")
        A(f"v_lshlrev_b32 v{188+j}, {F}, v{188+j}")
    A("s_lshr_b32 s55, s24, 1")
    A(f"s_mul_i32 s55, s55, {160<<F}")
    A(f"s_add_u32 s55, s55, {G.WS_FY:#x}")
    fy = "\n".join(f"buffer_load_dword v{192+j}, v{188+j}, {WS}, s55 offen sc1" for j in range(3))
    A(fy)
    row_stats()
    for i in range(20):
        A(f"v_pk_fma_f32 {v(Y+2*i,2)}, {v(X+2*i,2)}, {v(S+6,2)}, {v(S+4,2)}")
    A("s_waitcnt vmcnt(0)")
    n1 = spin.n
    spin(lambda: A("v_xor_b32 v195, v192, v19\nv_xor_b32 v196, v193, v19\nv_xor_b32 v197, v194, v19\n"
                   "v_or3_b32 v195, v195, v196, v197\nv_cmp_ne_u32 vcc, 0, v195"), fy)
    ST(33)
    for i in range(5):
        A(f"s_add_u32 s55, s51, {G.WS_YF + 4096*i:#x}")
        for hh in range(2):
            A(f"buffer_load_dwordx2 {v(TY+4*i+2*hh,2)}, v26, {WS}, s55 offen offset:{128*hh} sc1")
    for i in range(20):
        if i % 2 == 0: A(f"s_waitcnt vmcnt({9-i//2})")
        t_ = 28 + 2 * (i & 1)
        unpack(A, t_, t_ + 1, TY + i)
        A(f"v_pk_fma_f32 {v(X+2*i,2)}, {v(t_,2)}, {v(Y+2*i,2)}, {v(X+2*i,2)}")
        acc_stats(X + 2 * i, i == 0)
    row_stats()
    vm = G.VM(A)
    for i in range(5):
        for j in range(4):
            x = X + 8 * i + 2 * j; y = Y + 8 * i + 2 * j
            A(f"v_pk_fma_f32 {v(y,2)}, {v(x,2)}, {v(S+6,2)}, {v(S+4,2)}")
            A(f"v_cvt_pk_bf16_f32 v{TY+4*i+j}, v{y}, v{y+1}")
        A(f"s_add_u32 s55, s54, {G.WS_XN + 8192*i:#x}")
        vm.issue(f"buffer_store_dwordx4 {v(TY+4*i,4)}, v27, {WS}, s55 offen sc1")
    for i in range(5):
        for j in range(4):
            x = X + 8 * i + 2 * j
            A(f"v_cvt_pk_bf16_f32 v{T+4*i+j}, v{x}, v{x+1}")
        A(f"s_add_u32 s55, s54, {G.WS_X1 + 8192*i:#x}")
        q = vm.issue(f"buffer_store_dwordx4 {v(T+4*i,4)}, v27, {WS}, s55 offen sc1")
    ST(31)
    A(f"s_lshl_b32 s63, s3, {7+F}")
    A("s_add_u32 s63, s63, s42")
    A(f"s_add_u32 s63, s63, {G.WS_FX:#x}")
    h_ = 0
    vm.wait(q)
    own_flag()
    ST(1)
    A("s_barrier")
    for n in range(W2PRE):
        A(w2_load(n))
    ST.sync()
    A(f"s_branch {Lgo}")
    A(f"{Ldma}:")
    vm = G.VM(A); vm.n = 36
    vm.issue(fw2)
    vm.wait_all()
    spin.n = 15
    spin(tok_test, fw2)
    spin.n = n1 + 1
    if HTOUCH:
        Lnt = A.label("notouch")
        A("s_cmp_lt_u32 s47, 20")
        A(f"s_cbranch_scc1 {Lnt}")
        A(f"v_lshlrev_b32 v24, {F}, v0")
        A(f"s_mov_b32 s55, {G.WS_FW:#x}")
        ld = f"buffer_load_dword v18, v24, {WS}, s55 offen sc1"
        A(ld)
        A("s_waitcnt vmcnt(0)")
        spin.n = 15
        spin(tok_test, ld)
        spin.n = n1 + 1
        tot = G.SZ_W2 >> G2MAP
        per = -(-tot // (24 * 8192))
        A("s_sub_u32 s51, s47, 20")
        A("s_lshl_b32 s51, s51, 1")
        A("s_add_u32 s51, s51, s29")
        A(f"s_mul_i32 s51, s51, {per*8192}")
        A(f"s_min_u32 s51, s51, {tot - per*8192}")
        if G2MAP:
            A("s_and_b32 s54, s45, 1")
            A(f"s_mul_i32 s54, s54, {tot}")
            A("s_add_u32 s51, s51, s54")
        A(f"s_add_u32 s51, s51, {G.WS_W2:#x}")
        A("v_lshlrev_b32 v24, 7, v0")
        for i in range(min(per, HTOUCH)):
            A(f"buffer_load_dword v254, v24, {WS}, s51 offen sc1")
            A("s_add_u32 s51, s51, 8192")
        A("s_waitcnt vmcnt(0)")
        A(f"{Lnt}:")
    for n in range(W2PRE):
        A(w2_load(n))
    ST(1)
    A("s_barrier")
    ST.sync()
    A(f"{Lgo}:")
    vm = G.VM(A); vm.n = 1 + W2PRE
    w2_rest = list(range(NW2C + W2PRE, 70))
    ST(2)
    A("s_mul_i32 s51, s26, 10")
    A("s_lshl_b32 s54, s28, 2")
    A("s_add_u32 s54, s54, s51")
    A("v_add_u32 v24, s54, v21")
    A("v_lshlrev_b32 v24, 8, v24")
    A("v_lshl_add_u32 v24, v22, 3, v24")
    A("s_lshl_b32 s51, s51, 1")
    A("s_add_u32 s51, s51, 16")
    A("v_add_u32 v25, s51, v21")
    A("v_lshlrev_b32 v25, 7, v25")
    A("v_lshl_add_u32 v25, v22, 3, v25")
    XSH = 320 // (32 >> G1MAP)
    A(f"s_and_b32 s51, s47, {(32>>G1MAP)-1}")
    A(f"s_mul_i32 s51, s51, {XSH}")
    A(f"v_min_u32 v12, {min(XSH,64)-1}, v0")
    A("v_add_u32 v12, s51, v12")
    A("v_lshlrev_b32 v12, 7, v12")
    A(f"s_and_b32 s51, s26, {7 >> G2MAP}")
    A(f"s_mul_i32 s51, s51, {28 << G2MAP}")
    A(f"v_min_u32 v21, {(28 << G2MAP) - 1}, v0")
    A("v_add_u32 v21, s51, v21")
    A("v_lshlrev_b32 v21, 7, v21")

    def touch(kind, L, st):
        if not TOUCH: return
        if kind == "x":
            A(f"s_add_u32 s55, s30, {G.WS_XN + L*G.SZ_SD + st*4*RB_XN:#x}")
            vm.issue(f"buffer_load_dword v254, v12, {WS}, s55 offen sc1")
            if XSH > 64:
                vm.issue(f"buffer_load_dword v254, v12, {WS}, s55 offen offset:{(XSH-64)*128} sc1")
        else:
            A(f"s_add_u32 s55, s32, {G.WS_HF + L*G.SZ_HF + st*4*RB_HF:#x}")
            vm.issue(f"buffer_load_dword v254, v21, {WS}, s55 offen sc1")

    def y_tiles():
        for st in range(2):
            for j in range(4, 6):
                A(f"v_mov_b32 v{YS+6*st+j}, 0")
                A(f"v_mov_b32 v{XS+6*st+j}, 0")
            A(f"s_add_u32 s55, s35, {G.WS_YF + st*8*20480:#x}")
            vm.issue(f"buffer_load_dwordx2 {v(YS+6*st,2)}, v24, {WS}, s55 offen sc1")
            vm.issue(f"buffer_load_dwordx2 {v(YS+6*st+2,2)}, v24, {WS}, s55 offen offset:128 sc1")
            vm.issue(f"s_mov_b64 exec, s[56:57]\nbuffer_load_dwordx2 {v(YS+6*st+4,2)}, v25, {WS}, s55 offen sc1\ns_mov_b64 exec, -1")

    def flag_load(kind, L, st):
        base = (G.WS_FX if kind == "x" else G.WS_FH) + L * (2048 << F) + st * (128 << F)
        sreg, vreg = (40, 13) if kind == "x" else (44, 13)
        return f"s_add_u32 s55, s{sreg}, {base:#x}\nbuffer_load_dword v18, v{vreg}, {WS}, s55 offen sc1"

    def flag_store(kind, L, st):
        base = (G.WS_FX if kind == "x" else G.WS_FH) + L * (2048 << F) + st * (128 << F)
        sreg = 42 if kind == "x" else 46
        return (f"s_add_u32 s55, s{sreg}, {base:#x}\ns_mov_b64 exec, 1\n"
                f"buffer_store_dword v19, v20, {WS}, s55 offen sc1\ns_mov_b64 exec, -1")

    def check_flag(seq, kind, L, st):
        vm.wait(seq)
        spin(tok_test, flag_load(kind, L, st))
        touch(kind, L, st)

    def publish(q, kind, L, st):
        vm.wait(q)
        if kind == "h":
            vm.issue(flag_store(kind, L, st))
            return
        Ls = A.label("nopub")
        A("s_barrier")
        A("s_cmp_lg_u32 s3, 0")
        A(f"s_cbranch_scc1 {Ls}")
        A(flag_store(kind, L, st))
        A(f"{Ls}:")

    def rdA(ks, t):
        off = ks * 7168 + t * 1024
        A(f"ds_read_b128 {v(AF+4*t,4)}, v{2+(off>>16)} offset:{off & 0xffff}")

    def own_pairs(st):
        b = BANK[st]
        return [b, b + 2, b + 4, b + 6, b + 16, b + 18]

    def sum_regs(st):
        b = BANK[st]
        return [b + 20 + 2 * i for i in range(10)] + [b + 8 + 2 * i for i in range(4)] + [244, 246]

    def sums_loads(st):
        out = []
        for p, r in enumerate(sum_regs(st)):
            pre = f"s_add_u32 s61, s48, {G.WS_SUM + st*8*8192 + (p>>3)*4096:#x}\n" if p % 8 == 0 else ""
            out.append(pre + f"buffer_load_dwordx2 {v(r,2)}, v14, {WS}, s61 offen offset:{512*(p&7)} sc1")
        return out

    def phase_E(E, st, box):
        b = BANK[st]
        SUr = sum_regs(st)
        U = 216
        E.wait(box)

        def test():
            A(f"v_pk_add_f32 {v(U,2)}, {v(SUr[0],2)}, {v(SUr[1],2)}")
            A(f"v_pk_add_f32 {v(U+2,2)}, {v(SUr[2],2)}, {v(SUr[3],2)}")
            for p in range(4, 16, 2):
                A(f"v_pk_add_f32 {v(U,2)}, {v(U,2)}, {v(SUr[p],2)}")
                A(f"v_pk_add_f32 {v(U+2,2)}, {v(U+2,2)}, {v(SUr[p+1],2)}")
            A(f"v_pk_add_f32 {v(U,2)}, {v(U,2)}, {v(U+2,2)}")
            A(f"v_cmp_u_f32 vcc, v{U}, v{U+1}")
        E.atom(lambda: (ST(34 + 2 * st), spin(test, "\n".join(sums_loads(st))), ST(35 + 2 * st)), 4)
        Z = b + 20
        for h in range(2):
            E(f"v_mov_b32 v{Z+4*h}, v{U+h}")
            E(f"v_mov_b32 v{Z+4*h+2}, v{U+h}")
        E("s_nop 1")
        for h in range(2):
            E(f"v_permlane16_swap_b32 v{Z+4*h}, v{Z+4*h+2}")
        for h in range(4):
            E(f"v_mov_b32 v{Z+2*h+1}, v{Z+2*h}")
        E("s_nop 1")
        for h in range(4):
            E(f"v_permlane32_swap_b32 v{Z+2*h}, v{Z+2*h+1}")
        S1, S2, SA_, SB_, SC, SD, SE, SF = range(Z, Z + 8)
        M2, R2, M3, R3, T0, T1, T2 = Z + 8, Z + 10, Z + 12, Z + 14, Z + 16, Z + 17, Z + 18
        E(f"v_mov_b32 v{T0}, v{S1}")
        E(f"v_mov_b32 v{T1}, v{S2}")
        ln_stats(E, T0, T1, M2, R2, T2)
        E(f"v_fma_f32 v{T0}, -v{M2}, v{SE}, v{SA_}")
        E(f"v_mul_f32 v{T1}, v{M2}, v{SF}")
        E(f"v_fma_f32 v{S1}, v{R2}, v{T0}, v{S1}")
        E(f"v_fma_f32 v{T0}, -v{M2}, v{SA_}, v{SB_}")
        E(f"v_fma_f32 v{T1}, -2.0, v{SD}, v{T1}")
        E(f"v_add_f32 v{T0}, v{T0}, v{T0}")
        E(f"v_fma_f32 v{T1}, v{M2}, v{T1}, v{SC}")
        E(f"v_mul_f32 v{M2}, -v{M2}, v{R2}")
        E(f"v_fma_f32 v{T0}, v{R2}, v{T1}, v{T0}")
        E(f"v_mov_b32 v{R2+1}, v{R2}")
        E(f"v_fma_f32 v{S2}, v{R2}, v{T0}, v{S2}")
        E(f"v_mov_b32 v{M2+1}, v{M2}")
        ln_stats(E, S1, S2, M3, R3, T2)
        E(f"v_mul_f32 v{M3}, -v{M3}, v{R3}")
        E(f"v_mov_b32 v{R3+1}, v{R3}")
        E(f"v_mov_b32 v{M3+1}, v{M3}")
        XN = b + 8
        O = own_pairs(st)
        for j in range(6):
            y = U + 2 * (j & 1); d = Z + 2 + 2 * (j & 1)
            unpack(E, y, y + 1, YS + 6 * st + j)
            E(f"v_pk_fma_f32 {v(d,2)}, {v(O[j],2)}, {v(R2,2)}, {v(M2,2)}")
            E(f"v_pk_fma_f32 {v(O[j],2)}, {v(d,2)}, {v(y,2)}, {v(O[j],2)}")
            E(f"v_pk_fma_f32 {v(d,2)}, {v(O[j],2)}, {v(R3,2)}, {v(M3,2)}")
            E(f"v_cvt_pk_bf16_f32 v{XN+j}, v{d}, v{d+1}")
            if j == 3:
                E.issue(f"s_add_u32 s55, s36, {G.WS_XN + G.SZ_SD + st*4*RB_XN:#x}\n"
                        f"buffer_store_dwordx4 {v(XN,4)}, v8, {WS}, s55 offen sc1")
        q = E.issue(f"s_add_u32 s55, s36, {G.WS_XN + G.SZ_SD + st*4*RB_XN:#x}\ns_mov_b64 exec, s[56:57]\n"
                    f"buffer_store_dwordx2 {v(XN+4,2)}, v9, {WS}, s55 offen sc1\ns_mov_b64 exec, -1")
        for j in range(6):
            E(f"v_cvt_pk_bf16_f32 v{XS+6*st+j}, v{O[j]}, v{O[j]+1}")
        return q

    def g1_epilogue(L, st):
        A("s_nop 4")
        A(f"s_add_u32 s54, s34, {G.WS_HF + L*G.SZ_HF + st*4*RB_HF:#x}")
        last = None
        for t in range(7):
            for rb in range(2):
                c = ACC + 8 * t + 4 * rb
                A(f"v_permlane32_swap_b32 v{c}, v{c+2}")
                A(f"v_permlane32_swap_b32 v{c+1}, v{c+3}")
            for rb in range(2):
                c = ACC + 8 * t + 4 * rb
                A(f"v_pk_mul_f32 {v(c,2)}, {v(c,2)}, {v(c+2,2)}")
            for rb in range(2):
                c = ACC + 8 * t + 4 * rb
                d = ACC + (0 if t < 4 else 32) + 4 * rb + (t & 3)
                A(f"v_cvt_pk_bf16_f32 v{d}, v{c}, v{c+1}")
            if t == 3:
                for rb in range(2):
                    vm.issue(f"buffer_store_dwordx4 {v(ACC+4*rb,4)}, v7, {WS}, s54 offen offset:{1024*rb} sc1")
        for rb in range(2):
            x = ACC + 32 + 4 * rb
            A(f"v_mov_b32 v{24+4*rb}, v{x+2}")
            A(f"v_mov_b32 v{25+4*rb}, v{x}")
        A("s_nop 0")
        for rb in range(2):
            x = ACC + 32 + 4 * rb
            A(f"v_permlane16_swap_b32 v{24+4*rb}, v{x+3}")
            A(f"v_permlane16_swap_b32 v{25+4*rb}, v{26+4*rb}")
        A("s_nop 0")
        for rb in range(2):
            x = ACC + 32 + 4 * rb
            A(f"v_mov_b32_dpp v{26+4*rb}, v{x+1} quad_perm:[0,1,2,3] row_mask:0x8 bank_mask:0xf")
        A("s_nop 1")
        for rb in range(2):
            x = ACC + 32 + 4 * rb
            A(f"v_permlane32_swap_b32 v{26+4*rb}, v{x+3}")
        A("s_mov_b32 exec_hi, 0xffff")
        for rb in range(2):
            last = vm.issue(f"buffer_store_dwordx4 {v(ACC+32+4*rb,4)}, v7, {WS}, s54 offen offset:{2048+1024*rb} sc1")
        A("s_mov_b32 exec_hi, -1")
        return last

    def g2_side(E, L, st, xbox):
        b = BANK[st]
        O = own_pairs(st)
        E.mark(2)
        E("s_barrier")
        if xbox: E.wait(xbox)
        for j in range(6):
            unpack(E, O[j], O[j] + 1, XS + 6 * st + j)
        if L == 0:
            for j in range(6):
                unpack(E, YU[j], YU[j] + 1, YS + 6 * st + j)
                if j == 0:
                    E(f"v_mov_b32 v{EF[0]}, v{YU[0]}\nv_mov_b32 v{EF[0]+1}, v{YU[0]+1}")
                    E(f"v_pk_mul_f32 {v(EF[1],2)}, {v(YU[0],2)}, {v(YU[0],2)}")
                else:
                    E(f"v_pk_add_f32 {v(EF[0],2)}, {v(EF[0],2)}, {v(YU[j],2)}")
                    E(f"v_pk_fma_f32 {v(EF[1],2)}, {v(YU[j],2)}, {v(YU[j],2)}, {v(EF[1],2)}")
            E(f"v_add_f32 v{EF[0]}, v{EF[0]}, v{EF[0]+1}")
            E(f"v_add_f32 v{EF[1]}, v{EF[1]}, v{EF[1]+1}")
        E.mark(8)
        for t in range(5):
            E(f"ds_write_b128 v15, {v(b+20+4*t,4)} offset:{1024*t}")
        E.mark(9)
        E("s_waitcnt lgkmcnt(0)\ns_barrier")
        for n, t in enumerate((0, 1, 4)):
            E(f"ds_read_b128 {v(b+20+4*n,4)}, v16 offset:{1024*t}")
        for n, t in enumerate((2, 3, 4)):
            E(f"ds_read_b128 {v(b+32+4*n,4) if n < 2 else v(216,4)}, v1 offset:{1024*t}")
        E.mark(10)
        E("s_waitcnt lgkmcnt(0)\ns_barrier")
        for j in range(6):
            src = b + 32 + 2 * j if j < 4 else 216 + 2 * (j - 4)
            E(f"v_pk_add_f32 {v(b+20+2*j,2)}, {v(b+20+2*j,2)}, {v(src,2)}")

    def g2_tail(E, L, st, mid=None):
        b = BANK[st]
        O = own_pairs(st)
        for t in (2, 3, 4):
            E(f"ds_write_b128 v15, {v(b+4*t,4)} offset:{1024*t}")
        E("s_nop 3")
        for j in range(4):
            E(f"v_pk_add_f32 {v(O[j],2)}, {v(O[j],2)}, {v(b+20+2*j,2)}")
        E("s_waitcnt lgkmcnt(0)\ns_barrier")
        RC = [b + 32, b + 36, b + 8]
        for n, t in enumerate((2, 3, 4)):
            E(f"ds_read_b128 {v(RC[n],4)}, v17 offset:{1024*t}")
        for j in (4, 5):
            E(f"v_pk_add_f32 {v(O[j],2)}, {v(O[j],2)}, {v(b+20+2*j,2)}")
        if mid: mid()
        for j in range(6):
            if j % 2 == 0: E(f"s_waitcnt lgkmcnt({2-j//2})")
            E(f"v_pk_add_f32 {v(O[j],2)}, {v(O[j],2)}, {v(RC[j//2]+2*(j&1),2)}")
        if L == 1:
            P = b + 20
            for j in range(6):
                E(f"v_cvt_pk_bf16_f32 v{P+j}, v{O[j]}, v{O[j]+1}")
            E.issue(f"s_add_u32 s55, s38, {st*128*1280}\nbuffer_store_dwordx4 {v(P,4)}, v10, s[20:23], s55 offen")
            E.issue(f"s_add_u32 s55, s38, {st*128*1280}\ns_mov_b64 exec, s[56:57]\n"
                    f"buffer_store_dwordx2 {v(P+4,2)}, v11, s[20:23], s55 offen\ns_mov_b64 exec, -1")
            return None
        for j in range(4):
            E(f"v_cndmask_b32 v{b+16+j}, 0, v{b+16+j}, s[56:57]")
        Z = b + 20
        for j in range(6):
            x = O[j]; y = YU[j]; p = b + 8 + 2 * (j & 1)
            if j == 0: p = Z + 4
            E(f"v_pk_mul_f32 {v(p,2)}, {v(x,2)}, {v(y,2)}")
            terms = [(x, None), (x, x), (p, None), (p, x), (p, p), (p, y)]
            for n, (u, w) in enumerate(terms):
                z = Z + 2 * n
                if j == 0:
                    if w is not None: E(f"v_pk_mul_f32 {v(z,2)}, {v(u,2)}, {v(w,2)}")
                elif w is None:
                    first = O[0] if (j == 1 and n == 0) else z
                    E(f"v_pk_add_f32 {v(z,2)}, {v(first,2)}, {v(u,2)}")
                else:
                    E(f"v_pk_fma_f32 {v(z,2)}, {v(u,2)}, {v(w,2)}, {v(z,2)}")
        for n in range(6):
            E(f"v_add_f32 v{Z+2*n}, v{Z+2*n}, v{Z+2*n+1}")
        sr = [Z + 2 * n for n in range(6)] + EF
        E(f"v_permlane32_swap_b32 v{sr[6]}, v{sr[7]}")
        for n in range(3):
            E(f"v_permlane32_swap_b32 v{sr[2*n]}, v{sr[2*n+1]}")
        for n in (3, 0, 1, 2):
            E(f"v_add_f32 v{sr[2*n]}, v{sr[2*n]}, v{sr[2*n+1]}")
        E("s_nop 0")
        E(f"v_permlane16_swap_b32 v{sr[0]}, v{sr[2]}")
        E(f"v_permlane16_swap_b32 v{sr[4]}, v{sr[6]}")
        E(f"v_add_f32 v{b+12}, v{sr[0]}, v{sr[2]}")
        E(f"v_add_f32 v{b+13}, v{sr[4]}, v{sr[6]}")
        return E.issue(f"s_add_u32 s55, s49, {G.WS_SUM + st*8*8192:#x}\n"
                       f"buffer_store_dwordx2 {v(b+12,2)}, v14, {WS}, s55 offen sc1")

    PH = [("g1", 0, 20), ("g1", 1, 20), ("g2", 0, 14), ("g2", 1, 14)]
    D = Side(A, vm, True)
    carry = {}
    for L in range(2):
        stream = []
        for kind, st, n in PH:
            stream += [(kind, st, i) for i in range(n)]
        seqs = {}
        state = {"next": 0, "gate": 0, "cur": 0}
        Q = []
        phase_of = lambda n: 0 if n < 20 else 1 if n < 40 else 2 if n < 54 else 3

        def entry_ops(n):
            kind, st, i = stream[n]
            r = RING + 8 * (n % R)
            if kind == "g1":
                o = 2048 * (i & 1)
                base = G.WS_XN + L * G.SZ_SD + st * 4 * RB_XN + (i & ~1) * 2048
                pre = f"s_add_u32 s52, s30, {base:#x}" if not i & 1 else None
                return [(None, pre, f"buffer_load_dwordx4 {v(r,4)}, v2, {WS}, s52 offen offset:{o} sc1"),
                        (n, None, f"buffer_load_dwordx4 {v(r+4,4)}, v2, {WS}, s52 offen offset:{o+1024} sc1")]
            base = G.WS_HF + L * G.SZ_HF + st * 4 * RB_HF
            vo = "v6" if i < 7 else "v5"
            return [(None, f"s_add_u32 s52, s{64 + i % 7}, {base:#x}", f"buffer_load_dwordx4 {v(r,4)}, {vo}, {WS}, s52 offen sc1"),
                    (n, None, f"buffer_load_dwordx4 {v(r+4,4)}, {vo}, {WS}, s52 offen offset:2048 sc1")]

        def refill():
            if Q: return
            n = state["next"]
            if n < len(stream) and n < state["cur"] + R and phase_of(n) < state["gate"]:
                Q.extend(entry_ops(n))
                state["next"] += 1

        def pre_slot():
            refill()
            if Q and Q[0][1]:
                A(Q[0][1]); Q[0] = (Q[0][0], None, Q[0][2])
                return True
            return False

        def slot():
            pre_slot()
            if Q:
                tag, _, text = Q.pop(0)
                q = vm.issue(text)
                if tag is not None: seqs[tag] = q
                return True
            return False

        def need(n):
            while n not in seqs:
                assert slot(), n
            vm.wait(seqs[n])

        def x1_load(st):
            A(f"s_add_u32 s55, s36, {G.WS_X1 + st*4*RB_XN:#x}")
            vm.issue(f"buffer_load_dwordx4 {v(XS+6*st,4)}, v8, {WS}, s55 offen sc1")
            return [vm.issue(f"s_mov_b64 exec, s[56:57]\nbuffer_load_dwordx2 {v(XS+6*st+4,2)}, v9, {WS}, s55 offen sc1\ns_mov_b64 exec, -1")]

        nrd = 7 if L == 0 else 6
        for t in range(nrd):
            rdA(0, t)
        if L == 1:
            Lfin = A.label("fin")
            A("s_lshl_b32 s51, s2, 2")
            A("s_add_u32 s51, s51, s3")
            A("s_cmp_lg_u32 s51, 1023")
            A(f"s_cbranch_scc1 {Lfin}")
            A("v_lshrrev_b32 v24, 3, v0")
            A(f"v_lshl_add_u32 v24, v24, {8+F}, v13")
            A(f"s_mov_b32 s55, {G.WS_FX:#x}")
            ld = "\n".join(f"s_mov_b32 s55, {G.WS_FX + (j << (5+F)):#x}\nbuffer_load_dword v{26+j}, v24, {WS}, s55 offen sc1" for j in range(4))
            A(ld)
            A("s_waitcnt vmcnt(0)")
            sn = spin.n
            spin.n = 14
            spin(lambda: A("\n".join(f"v_xor_b32 v{248+j}, v{26+j}, v19" for j in range(4)) +
                           "\nv_or3_b32 v248, v248, v249, v250\nv_or_b32 v248, v248, v251\nv_cmp_ne_u32 vcc, 0, v248"), ld)
            spin.n = sn
            A(f"s_mov_b32 s63, {G.WS_EPOCH:#x}")
            own_flag()
            A(f"{Lfin}:")
            vm.wait_all()
        q = vm.issue(flag_load("x", L, 0))
        if L == 1:
            for x in sums_loads(1):
                sq = vm.issue(x)
        check_flag(q, "x", L, 0)
        ST(3 + 16 * L)
        state["gate"] = 1
        pend_flag = {}
        if L == 0:
            for _ in range(2 * FILL0): slot()
            y_tiles()
        else:
            for _ in range(2 * FILL0): slot()
            ST(32)
            A.set_hook(slot, PACE)
            q = phase_E(D, 1, [sq])
            A.set_hook(None)
            pend_flag[5] = (q[0], "x", 1, 1)
            rdA(0, 6)
        ST(4 + 16 * L)
        GX = 12 if L == 0 else env("GX", 14)
        fl_at = {GX - 4: ("x", 1), 30: ("h", 0), env("FH1", 50): ("h", 1)}
        gate_at = {GX: ("x", 1), 34: ("h", 0)}
        flq = None
        xbox = [None, None]
        side = None
        for n, (kind, st, i) in enumerate(stream):
            state["cur"] = n
            if n in (20, 40, 54):
                ST({20: 6, 40: 8, 54: 10}[n] + 16 * L)
            if env("DBG1", 0) and L == 0 and n in (1, 4, 8, 12, 13, 16, 24, 28, 34, 35):
                ST({1: 16, 4: 17, 8: 40, 12: 41, 13: 15, 16: 18, 24: 42, 28: 43, 34: 38, 35: 39}[n])
            if n in gate_at:
                check_flag(flq, gate_at[n][0], L, gate_at[n][1])
                state["gate"] += 1
                if L == 0 and n == 34: xbox[0] = x1_load(0)
            if n in pend_flag:
                q, k_, L_, st_ = pend_flag.pop(n)
                publish(q, k_, L_, st_)
            if n in fl_at:
                flq = vm.issue(flag_load(fl_at[n][0], L, fl_at[n][1]))
            if kind == "g2" and i == 0:
                side = Side(A, vm, False)
                g2_side(side, L, st, xbox[st])
                side2 = Side(A, vm, False)
                if L == 0 and st == 1:
                    side2.mark(env("SUMAT", 6))
                    for x in sums_loads(0):
                        sbox = side2.issue(x)
                    side2.mark(env("EAT", 12))
                    carry["xa"] = phase_E(side2, 0, sbox)
            need(n)
            r = RING + 8 * (n % R)
            if kind == "g1":
                more = not (st == 1 and i == 19)
                if i == 0 and st == 0:
                    A("s_waitcnt lgkmcnt(6)")
                for t in range(7):
                    c = ACC + 8 * t
                    for rb in range(2):
                        srcc = "0" if i == 0 else v(c + 4 * rb, 4)
                        A(f"v_mfma_f32_16x16x32_bf16 {v(c+4*rb,4)}, {v(AF+4*t,4)}, {v(r+4*rb,4)}, {srcc}")
                        if rb == 0:
                            if more: A("s_waitcnt lgkmcnt(5)")
                            elif t < 6: A(f"s_waitcnt lgkmcnt({5-t})")
                            if t in (1, 3, 5, 6): slot()
                            if L == 0 and w2_rest and n >= env('W2FROM', 0) and (t == 0 or (t == 4 and len(w2_rest) > 39 - n)):
                                w2q = vm.issue(w2_load(w2_rest.pop(0)))
                    if more:
                        rdA((i + 1) % 20, t)
                    if t in (0, 2, 4, 5): pre_slot()
            else:
                if n == 40 and L == 0:
                    assert not w2_rest
                    vm.wait(w2q)
                b = BANK[st] + (20 if i < 7 else 0)
                j = i % 7
                order = [(k, t) for k in range(2) for t in range(5)]
                if i == 13:
                    order = [(k, t) for k in range(2) for t in (2, 3, 4)] + [(k, t) for k in range(2) for t in (0, 1)]
                if i == 7:
                    assert all(w is None or True for _, w in side.items)
                    side.pump(1 << 30, 7)
                    A("s_nop 1")
                for m, (k, t) in enumerate(order):
                    c = b + 4 * t
                    zero = j == 0 and k == 0 and (i < 7 or t in (2, 3))
                    A(f"v_mfma_f32_16x16x32_bf16 {v(c,4)}, {w2reg(5*(2*j+k)+t)}, {v(r+4*k,4)}, {'0' if zero else v(c,4)}")
                    used = 0
                    if m in (0, 2, 4, 6): used = pre_slot()
                    if m in (1, 3, 5, 7): used = slot()
                    if not used or m & 1 == 0:
                        nb = len(side.items)
                        side.pump(2 - used, i)
                        if len(side.items) == nb and (not side.items or i < 10 or True):
                            if not side.items or side.items[0][1] is None:
                                side2.pump(2 - used, i if not side.items else min(i, 11))
            last_of_phase = n + 1 in (20, 40, 54, 68)
            if last_of_phase:
                state["cur"] = n + 1
                ST({20: 5, 40: 7, 54: 9, 68: 11}[n + 1] + 16 * L)
                if kind == "g1":
                    A.set_hook(slot, PACE)
                    q = g1_epilogue(L, st)
                    pend_flag[n + 1 + (4 if st == 0 else env("PF1", 6))] = (q, "h", L, st)
                    A.set_hook(None)
                    continue
                side.flush()
                if st == 0:
                    def mid():
                        check_flag(flq, "h", L, 1)
                        state["gate"] += 1
                        if L == 0: xbox[1] = x1_load(1)
                        ST(14 + 16 * L)
                        A.set_hook(slot, PACE // 3)
                    A("s_nop 2")
                    g2_tail(D, L, 0, mid)
                    A.set_hook(None)
                else:
                    side2.flush()
                    if L == 0: ST(12)
                    A("s_nop 2")
                    g2_tail(D, L, 1)
                    if L == 0:
                        publish(carry["xa"][0], "x", 1, 0)
                    ST(13 + 16 * L)
        assert not pend_flag and not Q
    ST.flush(2, 4)
    A(f"{Lend}:")
    A("s_endpgm")
    A.end_kernel(name, 512, 102, 256)
```

```python
from asmlib import v, a, s

CH_LDS = 37888
XOFF = 8 * 4160
WS = "s[12:15]"
PQ, PK, PV, PSH, PH, PD, PWG, PWU, PWD, POUT, PDBG = 64, 66, 68, 70, 72, 74, 78, 80, 82, 84, 86
RA, RB_ = 88, 8
SA, SB = "s[88:91]", "s[8:11]"
sT, s1, s2_, s3_, s4_, s5_, s6_, s7_ = 31, 33, 92, 93, 94, 95, 96, 97


def conv_role(A, G, ST, C):
    unpack = G.unpack
    F = G.FSH
    A(f"s_and_b32 s{s1}, s{sT}, 15")
    A(f"s_lshl_b32 s{s1}, s{s1}, 7")
    A(f"s_lshl_b32 s{s2_}, s3, 5")
    A(f"s_add_u32 s{s1}, s{s1}, s{s2_}")
    A(f"s_lshr_b32 s{s2_}, s{sT}, 4")
    A(f"s_lshl_b32 s{s2_}, s{s2_}, 6")
    A("v_lshrrev_b32 v26, 4, v0")
    A("v_lshlrev_b32 v26, 3, v26")
    A(f"v_add_u32 v26, s{s1}, v26")
    A("v_and_b32 v27, 15, v0")
    A("v_lshlrev_b32 v27, 2, v27")
    A(f"v_add_u32 v27, s{s2_}, v27")
    A("v_mul_u32_u24 v28, 1280, v26")
    A("v_lshl_add_u32 v28, v27, 1, v28")
    A("v_subrev_u32 v29, 3840, v28")
    A("v_lshlrev_b32 v30, 3, v27")
    A(f"s_movk_i32 s{s3_}, 5120")
    C.wait_args()
    A.srd(RA, PK, PK + 1, G.SZ_SD)
    A.srd(RB_, PV, PV + 1, G.SZ_SD)
    KR, VR, SR, KU, W, KV, VT_, O = 160, 184, 200, 208, 32, 128, 48, 160
    for r in range(3):
        A(f"buffer_load_dwordx2 {v(KR+2*r,2)}, v29, {SA}, 0 offen offset:{1280*r}")
    for r in range(8):
        so = "0" if r < 4 else f"s{s3_}"
        A(f"buffer_load_dwordx2 {v(KR+2*(r+3),2)}, v28, {SA}, {so} offen offset:{1280*(r&3)}")
    A.srd(RA, PSH, PSH + 1, 640 * 8)
    A(f"buffer_load_dwordx4 {v(SR,4)}, v30, {SA}, 0 offen")
    A(f"buffer_load_dwordx4 {v(SR+4,4)}, v30, {SA}, 0 offen offset:16")
    for r in range(8):
        so = "0" if r < 4 else f"s{s3_}"
        A(f"buffer_load_dwordx2 {v(VR+2*r,2)}, v28, {SB}, {so} offen offset:{1280*(r&3)}")
    A(f"s_lshl_b32 s{s1}, s{sT}, 2")
    A(f"s_add_u32 s{s1}, s{s1}, s3")
    A(f"s_mul_i32 s{s2_}, s3, {CH_LDS}")
    A.srd(RA, PH, PH + 1, 640 * 4096)
    A.srd(RB_, PD, PD + 1, 1280)
    A(f"s_lshl_b32 s{s3_}, s{s1}, 12")
    A(f"s_lshl_b32 s{s4_}, s{s1}, 1")
    A("v_lshlrev_b32 v2, 4, v0")
    A("v_mov_b32 v20, 0")
    HW = [56 + 8 * k for k in range(4)]
    VD = 52
    A(f"buffer_load_ushort v{VD}, v20, {SB}, s{s4_} offen")
    C.epoch_load()
    ST(16)
    A("v_lshlrev_b32 v31, 12, v27")
    A("v_add_u32 v31, 4080, v31")
    A("v_lshlrev_b32 v30, 1, v26")
    A("v_sub_u32 v53, v31, v30")
    C.setup()
    NL = 23
    for r in range(11):
        A(f"s_waitcnt vmcnt({NL-1-r})")
        unpack(A, KU + 4 * r, KU + 4 * r + 1, KR + 2 * r)
        unpack(A, KU + 4 * r + 2, KU + 4 * r + 3, KR + 2 * r + 1)
    A(f"s_waitcnt vmcnt({NL-13})")
    for c in range(4):
        unpack(A, W + 0 + c, W + 4 + c, SR + 2 * c)
        unpack(A, W + 8 + c, W + 12 + c, SR + 2 * c + 1)
    for r in range(8):
        for p in range(2):
            A(f"v_pk_mul_f32 {v(KV+4*r+2*p,2)}, {v(KU+4*r+2*p,2)}, {v(W+12+2*p,2)}")
        for j in (2, 1, 0):
            for p in range(2):
                d = KV + 4 * r + 2 * p
                A(f"v_pk_fma_f32 {v(d,2)}, {v(KU+4*(r+3-j)+2*p,2)}, {v(W+4*j+2*p,2)}, {v(d,2)}")
    ST(17)
    for r in range(8):
        A(f"s_waitcnt vmcnt({NL-14-r})")
        t = VT_ if r & 1 else W
        unpack(A, t, t + 1, VR + 2 * r)
        unpack(A, t + 2, t + 3, VR + 2 * r + 1)
        for p in range(2):
            d = KV + 4 * r + 2 * p
            A(f"v_pk_mul_f32 {v(d,2)}, {v(d,2)}, {v(t+2*p,2)}")
    for c in range(4):
        o = O + 4 * c
        for i in range(4):
            A(f"v_cvt_pk_bf16_f32 v{o+i}, v{KV+4*(7-2*i)+c}, v{KV+4*(6-2*i)+c}")
        A(f"s_mov_b32 s{s4_}, {G.WS_XR + c*4096:#x}")
        A(f"buffer_store_dwordx4 {v(o,4)}, v53, {WS}, s{s4_} offen sc1")
    for k in range(4):
        A(f"buffer_load_dwordx4 {v(HW[k]+4,4)}, v2, {SA}, s{s3_} offen offset:{1024*k}")
    ST(40)
    Z = 224
    for i in range(4):
        A(f"v_mov_b32 v{Z+i}, 0")
        A(f"v_mov_b32 v{HW[0]+i}, 0")
    VA, VB, VW, VS, VT, VO = 220, 221, 222, 228, 229, 230
    A(f"v_add_u32 v{VW}, s{s2_}, v2")
    A("v_and_b32 v24, 31, v0")
    A("v_min_u32 v24, 29, v24")
    A("v_lshlrev_b32 v24, 4, v24")
    A(f"v_add_u32 v24, {XOFF+4096}, v24")
    A("v_and_b32 v25, 7, v0")
    A("v_mul_u32_u24 v25, 4160, v25")
    A("v_cmp_gt_u32 vcc, 32, v0")
    A("v_bfe_u32 v26, v0, 3, 1")
    A("v_add_u32 v26, v26, v21")
    A("v_cndmask_b32 v24, v25, v24, vcc")
    A(f"v_add_u32 v24, s{s2_}, v24")
    A(f"ds_write_b128 v24, {v(Z,4)}")
    A("v_lshlrev_b32 v26, 4, v26")
    A(f"v_add3_u32 v{VA}, v25, v26, s{s2_}")
    A("v_lshlrev_b32 v24, 5, v22")
    A(f"v_sub_u32 v25, {XOFF+480}, v24")
    A("v_lshl_add_u32 v25, v21, 4, v25")
    A(f"v_add_u32 v{VB}, s{s2_}, v25")
    A("v_lshl_add_u32 v24, v21, 3, v24")
    A(f"v_add_u32 v{VS}, s{s2_}, v24")
    A("v_bfe_u32 v24, v0, 2, 2")
    A(f"v_mul_u32_u24 v24, {CH_LDS}, v24")
    A("v_lshl_add_u32 v24, v21, 5, v24")
    A("v_and_b32 v25, 3, v0")
    A("v_lshl_add_u32 v24, v25, 3, v24")
    A(f"s_lshl_b32 s{s4_}, s3, 10")
    A(f"v_add_u32 v{VT}, s{s4_}, v24")
    A("v_mul_u32_u24 v25, 20480, v21")
    A(f"v_lshl_add_u32 v{VO}, v22, 3, v25")
    A(f"s_mul_i32 s{s5_}, s3, {32*20480}")
    A(f"s_lshl_b32 s{s4_}, s{sT}, 7")
    A(f"s_add_u32 s{s5_}, s{s5_}, s{s4_}")
    A(f"s_add_u32 s{s5_}, s{s5_}, {G.WS_YF:#x}")

    def hcopies(k):
        Wk = HW[k]
        T = 96 + 20 * (k & 1)
        Y, SE, SO = T, T + 6, T + 12
        off = lambda c: c * 4160 + 16 + 1024 * k
        A(f"ds_write_b128 v{VW}, {v(Wk+4,4)} offset:{off(7)}")
        for i in range(4):
            A(f"v_mov_b32_dpp v{Wk+i}, v{Wk+4+i} wave_shr:1 row_mask:0xf bank_mask:0xf")
        if k < 3:
            for i in range(4):
                A(f"v_mov_b32_dpp v{HW[k+1]+i}, v{Wk+4+i} wave_ror:1 row_mask:0xf bank_mask:0xf")
        A(f"ds_write_b128 v{VW}, {v(Wk+2,4)} offset:{off(3)}")
        for i in range(6):
            A(f"v_mov_b32 v{Y+i}, v{Wk+1+i}")
        A(f"ds_write_b128 v{VW}, {v(Y,4)} offset:{off(1)}")
        A(f"ds_write_b128 v{VW}, {v(Y+2,4)} offset:{off(5)}")
        for i in range(6):
            A(f"v_alignbit_b32 v{SE+i}, v{Wk+i+1}, v{Wk+i}, 16")
        A(f"ds_write_b128 v{VW}, {v(SE,4)} offset:{off(0)}")
        A(f"ds_write_b128 v{VW}, {v(SE+2,4)} offset:{off(4)}")
        for i in range(6):
            A(f"v_alignbit_b32 v{SO+i}, v{Wk+i+2}, v{Wk+i+1}, 16")
        A(f"ds_write_b128 v{VW}, {v(SO,4)} offset:{off(2)}")
        A(f"ds_write_b128 v{VW}, {v(SO+2,4)} offset:{off(6)}")
        A("s_waitcnt lgkmcnt(6)")
    A(f"s_lshl_b32 s63, s{sT}, {F}")
    A(f"s_add_u32 s63, s63, {G.WS_FK:#x}")
    A("s_waitcnt vmcnt(4)")
    A("v_add_u32 v19, 1, v19")
    A("s_barrier")
    Lnf = A.label("noflag")
    A("s_cmp_lg_u32 s3, 0")
    A(f"s_cbranch_scc1 {Lnf}")
    C.own_flag()
    A(f"{Lnf}:")
    ST(15)
    for k in range(3):
        A(f"s_waitcnt vmcnt({3-k})")
        hcopies(k)
    A("s_waitcnt vmcnt(0)")
    ST(41)
    A(f"s_and_b32 s{s4_}, s{sT}, 0xf0")
    A(f"s_lshl_b32 s{s4_}, s{s4_}, {F}")
    A(f"s_add_u32 s{s4_}, s{s4_}, {G.WS_FK:#x}")
    A(f"v_lshlrev_b32 v24, {F}, v22")
    C.w2_addr()
    fk = f"buffer_load_dword v18, v24, {WS}, s{s4_} offen sc1"
    A(fk)
    hcopies(3)
    C.rot_tables()
    C.fw1_addr()
    AD = 216
    A("v_sub_u32 v25, 15, v22")
    A("v_and_b32 v26, 1, v25")
    A("v_lshlrev_b32 v26, 4, v26")
    A(f"v_lshlrev_b32 v{VD}, v26, v{VD}")
    A("v_lshrrev_b32 v25, 1, v25")
    A("v_lshlrev_b32 v26, 2, v21")
    A("v_sub_u32 v25, v25, v26")
    for i in range(4):
        A(f"v_cmp_eq_u32 vcc, {i}, v25")
        A("s_nop 1")
        A(f"v_cndmask_b32 v{AD+i}, 0, v{VD}, vcc")
    A("s_waitcnt vmcnt(0)")
    C.spin(lambda: A("v_cmp_ne_u32 vcc, v19, v18"), fk)
    ST(18)
    A(f"s_add_u32 m0, s{s2_}, {XOFF}")
    A(f"s_add_u32 s{s4_}, s{s3_}, {G.WS_XR}")
    for i in range(4):
        A(f"buffer_load_dwordx4 v2, {WS}, s{s4_} offen offset:{1024*i} sc1 lds")
    ACC = 184
    FA = [56, 120]; FB = [88, 152]

    def rdA(buf, jp, i):
        A(f"ds_read_b128 {v(FA[buf]+4*i,4)}, v{VA} offset:{64*jp+512*i}")

    def rdB(buf, jp, d):
        A(f"ds_read_b128 {v(FB[buf]+4*d,4)}, v{VB} offset:{512*(7-d)+64*jp}")
    A("s_waitcnt lgkmcnt(0)")
    for i in range(8):
        rdA(0, 0, i)
    A("s_waitcnt vmcnt(0) lgkmcnt(0)")
    ST(42)
    for i in range(8):
        rdB(0, 0, i)
    C.q_loads()
    C.poison()
    for nt in range(8):
        A(f"s_waitcnt lgkmcnt({7-nt})")
        A(f"v_mfma_f32_16x16x32_bf16 {v(ACC+4*nt,4)}, {v(AD,4)}, {v(FB[0]+4*nt,4)}, 0")

    def stage(t):
        A(f"v_cvt_pk_bf16_f32 v{56+2*t}, v{ACC+4*t}, v{ACC+4*t+1}")
        A(f"v_cvt_pk_bf16_f32 v{56+2*t+1}, v{ACC+4*t+2}, v{ACC+4*t+3}")
        A(f"ds_write_b64 v{VS}, {v(56+2*t,2)} offset:{512*t}")

    w2 = []
    tot = [0]

    def jstep(b, jn, last=False):
        A("s_waitcnt lgkmcnt(0)")
        reads = []
        if not last:
            for i in range(8):
                reads.append(("A", i)); reads.append(("B", i))
        n = 0
        for i in range(8):
            for nt in range(i, 8):
                A(f"v_mfma_f32_16x16x32_bf16 {v(ACC+4*nt,4)}, {v(FA[b]+4*i,4)}, {v(FB[b]+4*(nt-i),4)}, {v(ACC+4*nt,4)}")
                n += 1; tot[0] += 1
                if reads and n % 3 != 0:
                    if len(reads) == 1:
                        A("s_waitcnt lgkmcnt(8)")
                    kind, idx = reads.pop(0)
                    (rdA if kind == "A" else rdB)(1 - b, jn, idx)
                elif w2 and tot[0] >= (C.NW2C - len(w2)) * C.W2GAP:
                    A(C.w2_load(w2.pop(0)))
                if last and nt == 7 and 3 <= i:
                    stage(i - 3)
        assert not reads
    Ll = A.label("convloop"); Lx = A.label("convlast")
    A(f"s_mov_b32 s{s4_}, 3")
    A(f"{Ll}:")
    jstep(0, 1)
    A(f"s_cmp_eq_u32 s{s4_}, 0")
    A(f"s_cbranch_scc1 {Lx}")
    jstep(1, 2)
    A(f"v_add_u32 v{VA}, 128, v{VA}")
    A(f"v_add_u32 v{VB}, 128, v{VB}")
    A(f"s_sub_u32 s{s4_}, s{s4_}, 1")
    A(f"s_branch {Ll}")
    A(f"{Lx}:")
    A(C.fw)
    jstep(1, None, True)
    ST(43)
    for t in range(5, 8):
        if t == 7: A("s_nop 1")
        stage(t)
    A("s_waitcnt vmcnt(0) lgkmcnt(0)")
    A("s_barrier")
    YR = 72
    for i in range(8):
        A(f"ds_read_b64_tr_b16 {v(YR+2*i,2)}, v{VT} offset:{128*i}")
    for i in range(8):
        A(f"s_waitcnt lgkmcnt({7-i})")
        A(f"buffer_store_dwordx2 {v(YR+2*i,2)}, v{VO}, {WS}, s{s5_} offen sc1")
        A(f"s_add_u32 s{s5_}, s{s5_}, {4*20480}")
    A("s_barrier")


def w1_issue(A, G, st_, lds):
    A(f"s_lshr_b32 s{s2_}, s{st_}, 2")
    A("s_cmp_ge_u32 s3, 2")
    A(f"s_cselect_b32 s{RA}, s{PWU}, s{PWG}")
    A(f"s_cselect_b32 s{RA+1}, s{PWU+1}, s{PWG+1}")
    A(f"s_cmp_ge_u32 s{s2_}, 27")
    A(f"s_cselect_b32 s{RA+2}, 0, {640*3456:#x}")
    A(f"s_mov_b32 s{RA+3}, 0x20000")
    A("v_lshrrev_b32 v24, 3, v0")
    A("v_mul_u32_u24 v24, 3456, v24")
    A("v_and_b32 v25, 7, v0")
    A("v_lshl_add_u32 v24, v25, 4, v24")
    A(f"s_and_b32 s{s3_}, s{st_}, 3")
    A(f"s_lshl_b32 s{s3_}, s{s3_}, 1")
    A(f"s_add_u32 s{s3_}, s{s3_}, s29")
    A(f"s_mul_i32 s{s3_}, s{s3_}, {80*3456}")
    A(f"s_min_u32 s{s4_}, s{s2_}, 26")
    A(f"s_lshl_b32 s{s4_}, s{s4_}, 7")
    A(f"s_add_u32 s{s3_}, s{s3_}, s{s4_}")
    A(f"s_mul_i32 s{s4_}, s3, 10240")
    for i in range(10):
        A(f"s_add_u32 m0, s{s4_}, {lds+1024*i}")
        A("s_nop 0")
        A(f"buffer_load_dwordx4 v24, {SA}, s{s3_} offen lds")
        A(f"s_add_u32 s{s3_}, s{s3_}, {8*3456}")


def w1_process(A, G, st_, lds, F):
    A("v_bfe_u32 v25, v0, 2, 2")
    A("v_lshl_add_u32 v25, v21, 3, v25")
    A("v_lshlrev_b32 v25, 7, v25")
    A("v_and_b32 v26, 1, v0")
    A("v_lshl_add_u32 v25, v26, 3, v25")
    A("v_bfe_u32 v26, v0, 1, 1")
    A("v_mul_u32_u24 v26, 20480, v26")
    A(f"s_lshl_b32 s{s3_}, s3, 5")
    A(f"s_add_u32 s{s3_}, s{s3_}, {lds}")
    A(f"v_add3_u32 v25, v25, v26, s{s3_}")
    for ks in range(5):
        for j in range(2):
            f = F + 8 * ks + 4 * j
            off = 4096 * ks + 16 * j
            if ks == 3 and j == 1: A("s_waitcnt lgkmcnt(8)")
            A(f"ds_read_b64_tr_b16 {v(f,2)}, v25 offset:{off}")
            A(f"ds_read_b64_tr_b16 {v(f+2,2)}, v25 offset:{off+512}")
    for j in range(2):
        A(f"s_lshr_b32 s{s3_}, s{st_}, 2")
        A(f"s_lshl_b32 s{s3_}, s{s3_}, 3")
        A(f"s_lshl_b32 s{s4_}, s3, 1")
        A(f"s_add_u32 s{s3_}, s{s3_}, s{s4_}")
        A(f"s_add_u32 s{s3_}, s{s3_}, {j}")
        A(f"s_mul_i32 s{s4_}, s{s3_}, 9363")
        A(f"s_lshr_b32 s{s4_}, s{s4_}, 16")
        A(f"s_mul_i32 s{s5_}, s{s4_}, 7")
        A(f"s_sub_u32 s{s3_}, s{s3_}, s{s5_}")
        A(f"s_mul_i32 s{s4_}, s{s4_}, 143360")
        A(f"s_lshl_b32 s{s3_}, s{s3_}, 10")
        A(f"s_add_u32 s{s3_}, s{s3_}, s{s4_}")
        A(f"s_and_b32 s{s4_}, s{st_}, 3")
        A(f"s_mul_i32 s{s4_}, s{s4_}, 35840")
        A(f"s_add_u32 s{s3_}, s{s3_}, s{s4_}")
        A(f"s_add_u32 s{s6_+j}, s{s3_}, {G.WS_W1:#x}")
    A("s_waitcnt lgkmcnt(0)")
    for ks in range(5):
        for j in range(2):
            f = F + 8 * ks + 4 * j
            A(f"buffer_store_dwordx4 {v(f,4)}, v2, {WS}, s{s6_+j} offen sc1")
            A(f"s_add_u32 s{s6_+j}, s{s6_+j}, 7168")


def w2_issue(A, G, st_):
    A.srd(RB_, PWD, PWD + 1, 1728 * 1280)
    A("v_mul_u32_u24 v24, 205, v0")
    A("v_lshrrev_b32 v24, 11, v24")
    A("v_mul_u32_u24 v25, 10, v24")
    A("v_sub_u32 v25, v0, v25")
    A("v_mul_u32_u24 v24, 1280, v24")
    A("v_lshl_add_u32 v24, v25, 4, v24")
    A(f"s_lshr_b32 s{s3_}, s{st_}, 3")
    A(f"s_mul_i32 s{s3_}, s{s3_}, {224*1280}")
    A(f"s_mul_i32 s{s4_}, s3, {60*1280}")
    A(f"s_add_u32 s{s3_}, s{s3_}, s{s4_}")
    A(f"s_and_b32 s{s4_}, s{st_}, 7")
    A(f"s_mul_i32 s{s4_}, s{s4_}, 160")
    A(f"s_add_u32 s{s3_}, s{s3_}, s{s4_}")
    A(f"v_add_u32 v24, s{s3_}, v24")
    A(f"s_mul_i32 s{s4_}, s3, 9600")
    for i in range(10):
        A(f"s_add_u32 m0, s{s4_}, {960*i}")
        A("s_nop 0")
        A(f"buffer_load_dwordx4 v24, {SB}, 0 offen lds")
        A(f"v_add_u32 v24, {6*1280}, v24")


B0, B1 = 200, 204


def w2_addrs(A, G, st_):
    T = 216
    A(f"v_bfe_u32 v{T}, v0, 2, 2")
    A(f"v_and_b32 v{T+1}, 3, v0")
    A(f"s_lshl_b32 s{s3_}, s3, 1")
    A(f"s_min_u32 s{s3_}, s{s3_}, 5")
    for kk in range(2):
        A(f"s_add_u32 s{s5_}, s{s3_}, {kk}")
        A(f"s_lshl_b32 s{s5_}, s{s5_}, 2")
        A(f"v_add_u32 v24, s{s5_}, v21")
        A("v_mul_u32_u24 v25, 37, v24")
        A("v_lshrrev_b32 v25, 8, v25")
        A("v_mul_u32_u24 v26, 7, v25")
        A("v_sub_u32 v26, v24, v26")
        A("v_cmp_gt_u32 s[6:7], 4, v26")
        A("v_subrev_u32 v27, 4, v26")
        for hf in range(2):
            A(f"v_lshrrev_b32 v28, 1, v{T}")
            A(f"v_add_u32 v28, {2*hf}, v28")
            A("v_cmp_eq_u32 vcc, 3, v28")
            A("v_add_u32 v29, 4, v28")
            A("s_nop 0")
            A("v_cndmask_b32 v29, v29, v26, vcc")
            A("v_cndmask_b32_e64 v30, v27, 3, vcc")
            A("v_cndmask_b32 v29, v29, v28, s[6:7]")
            A("v_cndmask_b32 v30, v30, v26, s[6:7]")
            A("v_mul_u32_u24 v31, 56, v25")
            A("v_lshl_add_u32 v31, v29, 3, v31")
            A("v_and_b32 v29, 1, v30")
            A("v_lshl_add_u32 v31, v29, 2, v31")
            A("v_and_b32 v30, 2, v30")
            A("v_add_u32 v31, v31, v30")
            A(f"v_and_b32 v29, 1, v{T}")
            A("v_add_u32 v31, v31, v29")
            A("v_mul_u32_u24 v31, 160, v31")
            A(f"v_lshl_add_u32 v{B0+2*kk+hf}, v{T+1}, 4, v31")
            A(f"v_lshl_add_u32 v{B1+2*kk+hf}, v{T+1}, 3, v31")
    A(f"s_and_b32 s{s5_}, s{st_}, 7")
    A(f"s_mul_i32 s{s5_}, s{s5_}, 56")
    A(f"s_lshr_b32 s{s6_}, s{st_}, 3")
    A(f"s_mul_i32 s{s6_}, s{s6_}, 7")
    A(f"s_add_u32 s{s5_}, s{s5_}, s{s6_}")
    A(f"s_add_u32 s{s5_}, s{s5_}, s{s3_}")
    A(f"s_mul_i32 s{s5_}, s{s5_}, 5120")
    A(f"s_add_u32 s{s5_}, s{s5_}, {G.WS_W2:#x}")
    A("v_add_u32 v24, 4096, v2")


def w2_process(A, G, F):
    for kk in range(2):
        for t in range(5):
            f = F + 20 * kk + 4 * t
            ab = B0 if t < 4 else B1
            off = 64 * (t >> 1) + 8 * (t & 1) if t < 4 else 128
            A(f"ds_read_b64_tr_b16 {v(f,2)}, v{ab+2*kk} offset:{off}")
            A(f"ds_read_b64_tr_b16 {v(f+2,2)}, v{ab+2*kk+1} offset:{off}")
        for t in range(5):
            f = F + 20 * kk + 4 * t
            A(f"s_waitcnt lgkmcnt({8-2*t})")
            if t < 4:
                A(f"buffer_store_dwordx4 {v(f,4)}, v2, {WS}, s{s5_} offen offset:{1024*t} sc1")
            else:
                A(f"buffer_store_dwordx4 {v(f,4)}, v24, {WS}, s{s5_} offen sc1")
        A(f"s_add_u32 s{s5_}, s{s5_}, 5120")
```

```python
import sys, os
from asmlib import Asm, v, a, s

NAME = "interleave_layers__ssm_conv_h3__glu_gated_bilinear__prompt"
SZ_SD = 2048 * 640 * 2
WS_XR = 0x0000000; SZ_XR = 640 * 4096
WS_YF = 0x0500000
WS_X1 = 0x0780000
WS_XN = 0x0A00000
WS_W1 = 0x0F00000; SZ_W1 = 32 * 143360
WS_W2 = 0x1360000; SZ_W2 = 8 * 56 * 5 * 1024
WS_SUM = 0x1590000; SZ_SUM = 128 * 8192
FSH = int(os.environ.get("FSH", "7"))
SZ_FL = 2 * 64 * 32 << FSH
WS_FX = 0x1690000
WS_FH = WS_FX + SZ_FL
WS_FY = WS_FH + SZ_FL
WS_FW = WS_FY + (640 << FSH)
WS_FK = WS_FW + (192 << FSH)
WS_EPOCH = WS_FK + (640 << FSH)
assert WS_EPOCH + 128 <= 0x17D0000
LIST = int(os.environ.get("LIST", "0"))
WS_HF = 0x17D0000; SZ_HF = 64 * 114688
WS_END = WS_HF + 2 * SZ_HF
assert WS_W1 + SZ_W1 <= WS_W2 and WS_W2 + SZ_W2 <= WS_SUM and WS_SUM + SZ_SUM <= WS_FX
EPS = 0x3727c5ac
INV640 = 0x3acccccd

STAMPS = bool(int(os.environ.get("STAMPS", "0")))
WS_DBG = 0x3000000


class Stamps:
    def __init__(self, A, vreg):
        self.A = A; self.v = vreg; self.prev = None

    def init(self):
        if not STAMPS: return
        A = self.A
        A(f"v_mov_b32 v{self.v}, 0")
        A("s_memrealtime s[98:99]")
        A("s_waitcnt lgkmcnt(0)")
        A(f"v_writelane_b32 v{self.v}, s98, 62")
        self.prev = None
        self(0)

    def __call__(self, i):
        if not STAMPS: return
        A = self.A
        if self.prev is not None:
            A(f"v_writelane_b32 v{self.v}, s98, {self.prev}")
        A("s_memtime s[98:99]")
        self.prev = i

    def val(self, i, sreg):
        if not STAMPS: return
        self.A(f"v_writelane_b32 v{self.v}, s{sreg}, {i}")

    def sync(self):
        if not STAMPS: return
        if self.prev is not None:
            self.A("s_waitcnt lgkmcnt(0)")
            self.A(f"v_writelane_b32 v{self.v}, s98, {self.prev}")
        self.prev = None

    def flush(self, slot, wsreg):
        if not STAMPS: return
        A = self.A
        self(61)
        self.sync()
        A("s_memrealtime s[98:99]")
        A("s_waitcnt lgkmcnt(0)")
        A(f"v_writelane_b32 v{self.v}, s98, 63")
        A("s_mov_b64 exec, -1")
        A.srd(92, wsreg, wsreg + 1, 0x1000000, WS_DBG)
        A("s_lshl_b32 s100, s2, 10")
        A("s_lshl_b32 s101, s3, 8")
        A("s_add_u32 s100, s100, s101")
        A(f"s_add_u32 s100, s100, {slot*0x100000}")
        A("v_mbcnt_lo_u32_b32 v1, -1, 0")
        A("v_mbcnt_hi_u32_b32 v1, -1, v1")
        A("v_lshlrev_b32 v1, 2, v1")
        A(f"buffer_store_dword v{self.v}, v1, s[92:95], s100 offen")
        if int(os.environ.get("DBGOUT", "0")):
            L = A.label("nodbg")
            A("s_lshl_b32 s100, s2, 2")
            A("s_add_u32 s100, s100, s3")
            A("s_cmp_lg_u32 s100, 32")
            A(f"s_cbranch_scc1 {L}")
            A.srd(92, 86, 87, 256)
            A(f"v_readlane_b32 s100, v{self.v}, 0")
            for n, i in enumerate((16, 17, 15, 42, 39, 28, 33, 1, 4, 7, 11, 20, 23, 61)):
                A(f"v_readlane_b32 s101, v{self.v}, {i}")
                A("s_nop 3")
                A("s_sub_u32 s101, s101, s100")
                A(f"v_writelane_b32 v2, s101, {n}")
            A(f"v_readlane_b32 s100, v{self.v}, 62")
            A(f"v_readlane_b32 s101, v{self.v}, 63")
            A("s_nop 3")
            A("s_sub_u32 s101, s101, s100")
            A("v_writelane_b32 v2, s101, 14")
            A("s_mov_b64 exec, 0xffff")
            A("buffer_store_dword v2, v1, s[92:95], 0 offen")
            A(f"{L}:")


class VM:
    def __init__(self, A):
        self.A = A; self.n = 0; self.done = 0

    def issue(self, text):
        if self.n - self.done >= 62:
            self.wait(self.n - 40)
        q = self.n
        self.n += 1
        self.A(text)
        return q

    def wait(self, seq):
        if seq < self.done: return
        self.done = seq + 1
        self.A(f"s_waitcnt vmcnt({self.n - 1 - seq})")

    def wait_all(self):
        self.done = self.n
        self.A("s_waitcnt vmcnt(0)")


def lane_wave(A, sw=3):
    A("v_lshrrev_b32 v1, 6, v0")
    A("v_and_b32 v0, 63, v0")
    A(f"v_readfirstlane_b32 s{sw}, v1")


def unpack(A, dlo, dhi, src):
    A(f"v_lshlrev_b32 v{dlo}, 16, v{src}")
    A(f"v_and_b32 v{dhi}, 0xffff0000, v{src}")


def round_bf16(A, d, x):
    A(f"v_cvt_pk_bf16_f32 v{d}, v{x}, v{x}")
    A(f"v_lshlrev_b32 v{d}, 16, v{d}")


def ln_stats(A, vsum, vsq, vm, vr, t):
    A(f"v_mul_f32 v{vsum}, {INV640:#x}, v{vsum}")
    A(f"v_mul_f32 v{vsq}, {INV640:#x}, v{vsq}")
    A(f"v_fma_f32 v{vsq}, -v{vsum}, v{vsum}, v{vsq}")
    A(f"v_max_f32 v{vsq}, 0, v{vsq}")
    round_bf16(A, vm, vsum)
    round_bf16(A, t, vsq)
    A(f"v_add_f32 v{t}, {EPS:#x}, v{t}")
    round_bf16(A, t, t)
    A(f"v_sqrt_f32 v{t}, v{t}")
    A("s_nop 0")
    round_bf16(A, t, t)
    A(f"v_rcp_f32 v{vr}, v{t}")
    A("s_nop 0")


def swap_add(A, x, t, which):
    A(f"v_mov_b32 v{t}, v{x}")
    A("s_nop 1")
    A(f"v_permlane{which}_swap_b32 v{x}, v{t}")
    A(f"v_add_f32 v{x}, v{x}, v{t}")


from ffn import k_ffn


def main():
    A = Asm()
    k_ffn(A, sys.modules[__name__])
    hdr = "; generated by gen/gen.py - H3 long conv (Toeplitz MFMA) + bilinear GLU, two layers"
    out = sys.argv[1] if len(sys.argv) > 1 else f"cdna_kernels/{NAME}.s"
    open(out, "w").write(A.text(hdr))


if __name__ == "__main__":
    main()
```

```python
import sys, os
from asmlib import Asm, v, a, s

NAME = "interleave_layers__ssm_conv_h3__glu_gated_bilinear__prompt"
SZ_SD = 2048 * 640 * 2
WS_XR = 0x0000000; SZ_XR = 640 * 4096
WS_YF = 0x0500000
WS_X1 = 0x0780000
WS_XN = 0x0A00000
WS_W1 = 0x0F00000; SZ_W1 = 32 * 143360
WS_W2 = 0x1360000; SZ_W2 = 8 * 56 * 5 * 1024
WS_SUM = 0x1590000; SZ_SUM = 128 * 8192
FSH = int(os.environ.get("FSH", "7"))
SZ_FL = 2 * 64 * 32 << FSH
WS_FX = 0x1690000
WS_FH = WS_FX + SZ_FL
WS_FY = WS_FH + SZ_FL
WS_FW = WS_FY + (640 << FSH)
WS_FK = WS_FW + (192 << FSH)
WS_EPOCH = WS_FK + (640 << FSH)
assert WS_EPOCH + 128 <= 0x17D0000
LIST = int(os.environ.get("LIST", "0"))
WS_HF = 0x17D0000; SZ_HF = 64 * 114688
WS_END = WS_HF + 2 * SZ_HF
assert WS_W1 + SZ_W1 <= WS_W2 and WS_W2 + SZ_W2 <= WS_SUM and WS_SUM + SZ_SUM <= WS_FX
EPS = 0x3727c5ac
INV640 = 0x3acccccd

STAMPS = bool(int(os.environ.get("STAMPS", "0")))
WS_DBG = 0x3000000


class Stamps:
    def __init__(self, A, vreg):
        self.A = A; self.v = vreg; self.prev = None

    def init(self):
        if not STAMPS: return
        A = self.A
        A(f"v_mov_b32 v{self.v}, 0")
        A("s_memrealtime s[98:99]")
        A("s_waitcnt lgkmcnt(0)")
        A(f"v_writelane_b32 v{self.v}, s98, 62")
        self.prev = None
        self(0)

    def __call__(self, i):
        if not STAMPS: return
        A = self.A
        if self.prev is not None:
            A(f"v_writelane_b32 v{self.v}, s98, {self.prev}")
        A("s_memtime s[98:99]")
        self.prev = i

    def val(self, i, sreg):
        if not STAMPS: return
        self.A(f"v_writelane_b32 v{self.v}, s{sreg}, {i}")

    def sync(self):
        if not STAMPS: return
        if self.prev is not None:
            self.A("s_waitcnt lgkmcnt(0)")
            self.A(f"v_writelane_b32 v{self.v}, s98, {self.prev}")
        self.prev = None

    def flush(self, slot, wsreg):
        if not STAMPS: return
        A = self.A
        self(61)
        self.sync()
        A("s_memrealtime s[98:99]")
        A("s_waitcnt lgkmcnt(0)")
        A(f"v_writelane_b32 v{self.v}, s98, 63")
        A("s_mov_b64 exec, -1")
        A.srd(92, wsreg, wsreg + 1, 0x1000000, WS_DBG)
        A("s_lshl_b32 s100, s2, 10")
        A("s_lshl_b32 s101, s3, 8")
        A("s_add_u32 s100, s100, s101")
        A(f"s_add_u32 s100, s100, {slot*0x100000}")
        A("v_mbcnt_lo_u32_b32 v1, -1, 0")
        A("v_mbcnt_hi_u32_b32 v1, -1, v1")
        A("v_lshlrev_b32 v1, 2, v1")
        A(f"buffer_store_dword v{self.v}, v1, s[92:95], s100 offen")


class VM:
    def __init__(self, A):
        self.A = A; self.n = 0; self.done = 0

    def issue(self, text):
        if self.n - self.done >= 62:
            self.wait(self.n - 40)
        q = self.n
        self.n += 1
        self.A(text)
        return q

    def wait(self, seq):
        if seq < self.done: return
        self.done = seq + 1
        self.A(f"s_waitcnt vmcnt({self.n - 1 - seq})")

    def wait_all(self):
        self.done = self.n
        self.A("s_waitcnt vmcnt(0)")


def lane_wave(A, sw=3):
    A("v_lshrrev_b32 v1, 6, v0")
    A("v_and_b32 v0, 63, v0")
    A(f"v_readfirstlane_b32 s{sw}, v1")


def unpack(A, dlo, dhi, src):
    A(f"v_lshlrev_b32 v{dlo}, 16, v{src}")
    A(f"v_and_b32 v{dhi}, 0xffff0000, v{src}")


def round_bf16(A, d, x):
    A(f"v_cvt_pk_bf16_f32 v{d}, v{x}, v{x}")
    A(f"v_lshlrev_b32 v{d}, 16, v{d}")


def ln_stats(A, vsum, vsq, vm, vr, t):
    A(f"v_mul_f32 v{vsum}, {INV640:#x}, v{vsum}")
    A(f"v_mul_f32 v{vsq}, {INV640:#x}, v{vsq}")
    A(f"v_fma_f32 v{vsq}, -v{vsum}, v{vsum}, v{vsq}")
    A(f"v_max_f32 v{vsq}, 0, v{vsq}")
    round_bf16(A, vm, vsum)
    round_bf16(A, t, vsq)
    A(f"v_add_f32 v{t}, {EPS:#x}, v{t}")
    round_bf16(A, t, t)
    A(f"v_sqrt_f32 v{t}, v{t}")
    A("s_nop 0")
    round_bf16(A, t, t)
    A(f"v_rcp_f32 v{vr}, v{t}")
    A("s_nop 0")


def swap_add(A, x, t, which):
    A(f"v_mov_b32 v{t}, v{x}")
    A("s_nop 1")
    A(f"v_permlane{which}_swap_b32 v{x}, v{t}")
    A(f"v_add_f32 v{x}, v{x}, v{t}")


from ffn import k_ffn


def main():
    A = Asm()
    k_ffn(A, sys.modules[__name__])
    hdr = "; generated by gen/gen.py - H3 long conv (Toeplitz MFMA) + bilinear GLU, two layers"
    out = sys.argv[1] if len(sys.argv) > 1 else f"cdna_kernels/{NAME}.s"
    open(out, "w").write(A.text(hdr))


if __name__ == "__main__":
    main()
```

```python
import os
from asmlib import v, a, s
import front
from front import PQ, POUT, PDBG, sT, SA, RA

env = lambda k, d: int(os.environ.get(k, str(d)))
G1MAP = env("G1MAP", 2)
G2MAP = env("G2MAP", 0)
HTOUCH = env("HTOUCH", 0)
EARLYB = env("EARLYB", 1)
FSC = "" if env("FASTF", 0) else " sc1"
CODEPF = env("CODEPF", 1)
NW2C = 0 * env("NW2C", 0)
W2PRE = env("W2PRE", 30)
QFIRST = env("QFIRST", 1)
PACE = env("PACE", 12)
FILL0 = env("FILL0", 4)
TOUCH = env("TOUCH", 0)
R = 10
W2V, RING, ACC, AF, XS, YS = 32, 56, 136, 192, 220, 232
BANK = [176, 136]
RED = 143360
RB_XN = 40960
RB_HF = 114688
WS = "s[12:15]"
YU = [22, 24, 26, 28, 30, 248]
EF = [250, 252]


class Side:
    def __init__(self, A, vm, direct):
        self.A = A; self.vm = vm; self.direct = direct; self.items = []

    def _add(self, fn, w):
        if self.direct: fn()
        else: self.items.append((fn, w))

    def __call__(self, text):
        w = sum(2 if ln.strip().startswith("v_pk_") else 1 for ln in text.split("\n"))
        self._add(lambda: self.A(text), w)

    def issue(self, text):
        box = []
        self._add(lambda: box.append(self.vm.issue(text)), 2)
        return box

    def wait(self, box):
        self._add(lambda: self.vm.wait(box[0]), 1)

    def atom(self, fn, w=2):
        self._add(fn, w)

    def mark(self, step):
        if not self.direct: self.items.append((step, None))

    def pump(self, budget, step):
        while self.items and budget > 0:
            fn, w = self.items[0]
            if w is None:
                if step < fn: return
                self.items.pop(0); continue
            self.items.pop(0)
            fn(); budget -= w

    def flush(self):
        self.pump(1 << 30, 1 << 30)


def k_ffn(A, G):
    unpack, ln_stats = G.unpack, G.ln_stats
    F = G.FSH
    name = G.NAME + "_kernel"
    A.launches.append(f"; @launch {'kernel=' + name + ' ' if G.LIST else ''}grid=(256,1,1) block=(256,1,1) lds=163840")
    A.begin_kernel(name)
    A.nt_srds = ("s[88:91]", "s[8:11]", "s[16:19]")
    ST = G.Stamps(A, 255)
    Lend = A.label("end")
    A("s_cmp_ge_u32 s2, 256")
    A(f"s_cbranch_scc1 {Lend}")
    A("s_load_dwordx16 s[64:79], s[0:1], 0")
    A("s_load_dwordx8 s[80:87], s[0:1], 64")
    A("s_load_dwordx2 s[4:5], s[0:1], 96")
    ST.init()
    ST.sync()
    G.lane_wave(A)
    A("s_and_b32 s45, s2, 7")
    A("s_lshr_b32 s47, s2, 3")
    A("s_lshr_b32 s28, s3, 1")
    A("s_and_b32 s29, s3, 1")

    class C: pass

    def wait_args():
        A("s_waitcnt lgkmcnt(0)")
        A.srd(12, 4, 5, G.WS_END)

    def setup():
        A.srd(16, PQ, PQ + 1, G.SZ_SD)
        A.srd(20, POUT, POUT + 1, G.SZ_SD)
        if G2MAP == 0:
            A("s_mov_b32 s24, s45")
            A("s_mov_b32 s58, s47")
        else:
            A("s_and_b32 s24, s45, 6")
            A("s_lshr_b32 s51, s47, 4")
            A("s_add_u32 s24, s24, s51")
            A("s_bfe_u32 s58, s47, 0x20002")
            A("s_lshl_b32 s58, s58, 1")
            A("s_and_b32 s51, s45, 1")
            A("s_add_u32 s58, s58, s51")
            A("s_lshl_b32 s58, s58, 2")
            A("s_and_b32 s51, s47, 3")
            A("s_add_u32 s58, s58, s51")
        A("s_and_b32 s26, s58, 7")
        A("s_lshr_b32 s27, s58, 3")
        A("s_xor_b32 s39, s29, s58")
        A("s_and_b32 s39, s39, 1")
        m = G1MAP
        A(f"s_lshr_b32 s59, s45, {m}")
        A(f"s_lshl_b32 s59, s59, {m}")
        A(f"s_lshr_b32 s51, s47, {5-m}")
        A("s_add_u32 s59, s59, s51")
        A(f"s_and_b32 s25, s45, {(1<<m)-1}")
        A(f"s_lshl_b32 s25, s25, {5-m}")
        A(f"s_and_b32 s51, s47, {(32>>m)-1}")
        A("s_add_u32 s25, s25, s51")
        A("s_lshl_b32 s51, s59, 3")
        A("s_add_u32 s52, s51, s3")
        A("s_lshl_b32 s51, s24, 3")
        A("s_add_u32 s53, s51, s27")
        A(f"s_mul_i32 s30, s52, {RB_XN}")
        A(f"s_mul_i32 s32, s53, {RB_HF}")
        A(f"s_mul_i32 s51, s3, {14*2048}")
        A("s_add_u32 s32, s32, s51")
        A(f"s_mul_i32 s34, s52, {RB_HF}")
        A(f"s_mul_i32 s36, s53, {RB_XN}")
        A("s_lshl_b32 s51, s39, 10")
        A("s_add_u32 s36, s36, s51")
        A("s_lshl_b32 s38, s53, 1")
        A("s_add_u32 s38, s38, s39")
        A("s_lshl_b32 s48, s38, 13")
        A("s_lshl_b32 s51, s26, 1")
        A("s_add_u32 s51, s51, s28")
        A("s_lshl_b32 s51, s51, 9")
        A("s_add_u32 s49, s48, s51")
        A(f"s_mul_i32 s38, s38, {16*1280}")
        A("s_mov_b32 s35, s38")
        A("s_mul_i32 s51, s26, 160")
        A("s_add_u32 s38, s38, s51")
        A(f"s_lshl_b32 s40, s52, {5+F}")
        A(f"s_lshl_b32 s42, s53, {5+F}")
        A(f"s_lshl_b32 s51, s26, {F}")
        A("s_add_u32 s42, s42, s51")
        A(f"s_lshl_b32 s44, s53, {5+F}")
        A(f"s_lshl_b32 s51, s3, {3+F}")
        A("s_add_u32 s44, s44, s51")
        A(f"s_lshl_b32 s46, s52, {5+F}")
        A(f"s_lshl_b32 s51, s25, {F}")
        A("s_add_u32 s46, s46, s51")
        A("s_mov_b32 s50, 100000")
        A("s_cmp_eq_u32 s28, 0")
        A("s_cselect_b32 s56, -1, 0")
        A("s_cselect_b32 s57, 0, -1")
        A("v_lshlrev_b32 v2, 4, v0")
        A("v_add_u32 v3, 0x10000, v2")
        A("v_add_u32 v4, 0x20000, v2")
        A("s_lshl_b32 s51, s39, 10")
        A("v_add_u32 v5, s51, v2")
        A("v_xor_b32 v6, 1024, v5")
        A("v_lshrrev_b32 v21, 4, v0")
        A("v_and_b32 v22, 15, v0")
        A("v_lshlrev_b32 v23, 4, v22")

        def piece_off(dst):
            A("v_lshrrev_b32 v24, 2, v25")
            A(f"v_lshl_add_u32 v{dst}, v24, 11, v23")
            A("v_and_b32 v24, 3, v25")
            A(f"v_lshl_add_u32 v{dst}, v24, 8, v{dst}")
        A("s_mul_i32 s51, s25, 7")
        A("v_add_u32 v25, s51, v21")
        piece_off(7)
        A("s_mul_i32 s51, s26, 10")
        A("s_lshl_b32 s54, s28, 2")
        A("s_add_u32 s54, s54, s51")
        A("v_add_u32 v25, s54, v21")
        piece_off(8)
        A("s_add_u32 s51, s51, 8")
        A("v_lshrrev_b32 v25, 1, v21")
        A("v_add_u32 v25, s51, v25")
        piece_off(9)
        A("v_and_b32 v24, 1, v21")
        A("v_lshl_add_u32 v9, v24, 3, v9")
        A("v_mul_u32_u24 v24, 1280, v22")
        A("v_lshl_add_u32 v10, v21, 4, v24")
        A("s_lshl_b32 s51, s28, 6")
        A("v_add_u32 v10, s51, v10")
        A("v_lshl_add_u32 v11, v21, 3, v24")
        A("v_add_u32 v11, 128, v11")
        A("v_and_b32 v12, 31, v0")
        A(f"v_lshlrev_b32 v12, {F}, v12")
        A("v_and_b32 v13, 7, v0")
        A(f"v_lshlrev_b32 v13, {F}, v13")
        A("v_lshlrev_b32 v14, 5, v22")
        A("v_lshl_add_u32 v14, v21, 3, v14")
        for reg, x in ((15, 0), (16, 1), (17, 2), (1, 3)):
            A(f"s_xor_b32 s51, s3, {x}")
            A("s_mul_i32 s51, s51, 5120")
            A(f"s_add_u32 s51, s51, {RED}")
            A(f"v_add_u32 v{reg}, s51, v2")
        A("v_mov_b32 v20, 0")
        A("v_and_b32 v24, 3, v0")
        A("v_lshrrev_b32 v25, 2, v0")
        A("v_mul_u32_u24 v252, 1280, v24")
        A("v_lshl_add_u32 v252, v25, 4, v252")
        A("s_lshl_b32 s62, s24, 8")
        A("s_lshl_b32 s54, s29, 7")
        A("s_add_u32 s62, s62, s54")
        A("s_lshl_b32 s54, s58, 2")
        A("s_add_u32 s62, s62, s54")
        A("s_mul_i32 s62, s62, 1280")
        A("s_mul_i32 s60, s26, 56")
        A("s_mul_i32 s54, s3, 14")
        A("s_add_u32 s60, s60, s54")
        A("s_mul_i32 s60, s60, 5120")
        A(f"s_add_u32 s60, s60, {G.WS_W2:#x}")
        A(f"s_lshl_b32 s37, s26, {F}")
        A(f"s_add_u32 s37, s37, {G.WS_FW:#x}")

    def epoch_load():
        A(f"s_mov_b32 s55, {G.WS_EPOCH:#x}")
        A(f"buffer_load_dword v19, v20, {WS}, s55 offen sc1")

    def poison():
        A("v_mov_b32 v30, -1")
        A("v_mov_b32 v31, -1")
        for st in range(2):
            A(f"s_add_u32 s55, s49, {G.WS_SUM + st*8*8192:#x}")
            A(f"buffer_store_dwordx2 v[30:31], v14, {WS}, s55 offen sc1")

    def spin(test, reload):
        Lc = A.label("chk"); Lo = A.label("ok")
        saved = A.hook
        A.hook = None
        A(f"{Lc}:")
        test()
        A(f"s_cbranch_vccz {Lo}")
        A("s_cmp_eq_u32 s50, 0")
        A(f"s_cbranch_scc1 {Lo}")
        A("s_sub_u32 s50, s50, 1")
        A("s_sleep 1")
        A("s_mov_b64 exec, vcc")
        A(reload)
        A("s_mov_b64 exec, -1")
        A("s_waitcnt vmcnt(0)")
        A(f"s_branch {Lc}")
        A(f"{Lo}:")
        ST.val(44 + spin.n, 50)
        spin.n += 1
        A.hook = saved
    spin.n = 0
    tok_test = lambda: A("v_cmp_ne_u32 vcc, v19, v18")

    T, TY, X, Y = 32, 76, 96, 136

    def q_loads():
        for i in range(5):
            A(f"buffer_load_dwordx4 {v(T+4*i,4)}, v252, s[16:19], s62 offen offset:{256*i}")
    C.wait_args, C.setup, C.epoch_load, C.poison, C.spin, C.q_loads = wait_args, setup, epoch_load, poison, spin, q_loads

    def w2reg(n):
        return a(4 * n, 4) if n < 64 else v(W2V + 4 * (n - 64), 4)

    def w2_addr():
        A("s_lshl_b32 s54, s28, 11")
        A("v_add_u32 v244, s54, v2")
        A("v_xor_b32 v245, 2048, v244")
        A("v_add_u32 v246, 4096, v2")
        A("v_lshlrev_b32 v247, 3, v13")
    fw2 = f"buffer_load_dword v18, v247, {WS}, s37 offen sc1"

    def rot_tables():
        for lo, cnt in ((0, 3), (3, 4)):
            A("s_cmp_lt_u32 s27, %d" % cnt)
            A("s_cselect_b32 s51, s27, 0")
            for j in range(lo, lo + cnt):
                A("s_lshl_b32 s54, s51, 12")
                A(f"s_add_u32 s54, s54, {lo*4096}")
                A(f"s_add_u32 s{64+j}, s32, s54")
                A("s_mul_i32 s54, s51, 10240")
                A(f"s_add_u32 s54, s54, {lo*10240}")
                A(f"s_add_u32 s{71+j}, s60, s54")
                A("s_add_u32 s51, s51, 1")
                A(f"s_cmp_eq_u32 s51, {cnt}")
                A("s_cselect_b32 s51, 0, s51")

    def w2_load(n):
        i, sl = divmod(n, 5)
        vo = ("v244", "v244", "v245", "v245", "v246")[sl]
        off = (0, 1024, 0, 1024, 0)[sl]
        sreg = 71 + i // 2
        txt = f"buffer_load_dwordx4 {w2reg(n)}, {vo}, {WS}, s{sreg} offen offset:{off} sc1"
        if sl == 4 and i % 2 == 0:
            txt += f"\ns_add_u32 s{sreg}, s{sreg}, 5120"
        return txt

    def own_flag():
        A("s_mov_b64 exec, 1")
        A(f"buffer_store_dword v19, v20, {WS}, s63 offen sc1")
        A("s_mov_b64 exec, -1")

    def fw1_addr():
        A("s_mul_i32 s51, s25, 7")
        A("s_add_u32 s54, s51, 6")
        A("s_lshr_b32 s51, s51, 3")
        A("s_lshr_b32 s54, s54, 3")
        A("s_sub_u32 s54, s54, s51")
        A("v_and_b32 v54, 1, v0")
        A("v_mul_u32_u24 v54, s54, v54")
        A(f"v_lshlrev_b32 v54, {F+2}, v54")
        A("s_lshl_b32 s51, s51, 2")
        A("s_add_u32 s51, s51, s3")
        A(f"s_lshl_b32 s43, s51, {F}")
        A(f"s_add_u32 s43, s43, {G.WS_FW + (64 << F):#x}")
    fw = f"buffer_load_dword v18, v54, {WS}, s43 offen sc1"

    def w1_dma(mid=None):
        A("s_mul_i32 s51, s25, 143360")
        A("s_mul_i32 s54, s3, 35840")
        A(f"s_add_u32 s52, s51, {G.WS_W1:#x}")
        A(f"s_lshr_b32 s51, s47, {5-G1MAP}")
        A("s_mul_i32 s51, s51, 5")
        A(f"s_lshr_b32 s51, s51, {G1MAP}")
        A("s_mul_i32 s51, s51, 7168")
        A("s_add_u32 s51, s51, s54")
        A("s_add_u32 s61, s54, 35840")
        for i in range(5):
            A("s_mov_b32 m0, s51")
            A("s_add_u32 s55, s52, s51")
            for j in range(7):
                if j == 4:
                    A("s_add_u32 m0, s51, 4096")
                    A("s_add_u32 s55, s55, 4096")
                A(f"buffer_load_dwordx4 v2, {WS}, s55 offen offset:{1024*(j&3)} sc1 lds")
            A("s_add_u32 s51, s51, 7168")
            A("s_cmp_eq_u32 s51, s61")
            A("s_cselect_b32 s51, s54, s51")
            if i == 0 and mid: mid()

    def w2_touch(helper):
        A(f"v_lshlrev_b32 v24, {F}, v0")
        A(f"s_mov_b32 s55, {G.WS_FW:#x}")
        ld = f"buffer_load_dword v18, v24, {WS}, s55 offen sc1"
        A(ld)
        A("s_waitcnt vmcnt(0)")
        sn = spin.n
        spin.n = 15
        spin(tok_test, ld)
        spin.n = sn
        nh, nc = env("TH", 3), env("TC", 4)
        if helper:
            A("s_sub_u32 s51, s47, 20")
            A("s_lshl_b32 s51, s51, 2")
            A("s_add_u32 s51, s51, s3")
            A(f"s_mul_i32 s51, s51, {nh}")
        else:
            A("s_lshl_b32 s51, s47, 1")
            A("s_add_u32 s51, s51, s29")
            A(f"s_mul_i32 s51, s51, {nc}")
            A(f"s_add_u32 s51, s51, {48*nh}")
        n = nh if helper else nc
        A(f"s_min_u32 s51, s51, {280-n}")
        A("s_lshl_b32 s51, s51, 13")
        A(f"s_add_u32 s51, s51, {G.WS_W2:#x}")
        A("v_lshlrev_b32 v24, 7, v0")
        for i in range(n):
            A(f"buffer_load_dword v254, v24, {WS}, s51 offen sc1")
            A("s_add_u32 s51, s51, 8192")
            if not helper and env("TSEQ", 0): A("s_waitcnt vmcnt(0)")

    Lhelp, Lw2r, Lhdone, Lidle, Ljoin, Ldma, Lgo, Lhw1, Lw1poll = [A.label(x) for x in ("help", "w2role", "hdone", "idle", "join", "dma", "go", "hw1", "w1poll")]
    C.own_flag = own_flag
    C.fw1_addr, C.fw = fw1_addr, fw
    C.w2_addr, C.rot_tables, C.w2_load, C.fw2, C.NW2C, C.W2GAP = w2_addr, rot_tables, w2_load, fw2, NW2C, env("W2GAP", 5)
    A("s_cmp_ge_u32 s47, 20")
    A(f"s_cbranch_scc1 {Lhelp}")
    A(f"s_mul_i32 s{sT}, s45, 20")
    A(f"s_add_u32 s{sT}, s{sT}, s47")
    front.conv_role(A, G, ST, C)
    ST(38)
    A("s_mul_i32 s63, s3, 160")
    A(f"s_add_u32 s63, s63, s{sT}")
    A(f"s_lshl_b32 s63, s63, {F}")
    A(f"s_add_u32 s63, s63, {G.WS_FY:#x}")
    Lslow = A.label("w1late")
    tok_test()
    A(f"s_cbranch_vccnz {Lslow}")

    def mid():
        A("s_waitcnt vmcnt(7)")
        own_flag()
        ST(39)
    w1_dma(mid)
    ST.sync()
    A(f"s_branch {Ljoin}")
    A(f"{Lslow}:")
    A("s_waitcnt vmcnt(0)")
    own_flag()
    A(f"s_branch {Lw1poll}")
    A(f"{Lhelp}:")
    A(f"s_sub_u32 s{sT}, s47, 20")
    A(f"s_lshl_b32 s{sT}, s{sT}, 3")
    A(f"s_add_u32 s{sT}, s{sT}, s45")
    wait_args()
    if env("HPRE", 1):
        A.srd(RA, front.PH, front.PH + 1, 640 * 4096)
        A("s_sub_u32 s51, s47, 20")
        A("s_lshl_b32 s51, s51, 2")
        A("s_add_u32 s51, s51, s3")
        A("s_min_u32 s51, s51, 39")
        A("s_lshl_b32 s51, s51, 13")
        A(f"s_mul_i32 s54, s45, {80*4096}")
        A("s_add_u32 s51, s51, s54")
        A("v_lshlrev_b32 v24, 7, v0")
        nt = A.nt_srds
        if env("HPRE", 1) == 2: A.nt_srds = ()
        A(f"buffer_load_dword v254, v24, {SA}, s51 offen")
        A.nt_srds = nt
    setup()
    epoch_load()
    q_loads()
    poison()
    A(f"s_cmp_ge_u32 s{sT}, 88")
    A(f"s_cbranch_scc1 {Lidle}")
    A(f"s_waitcnt vmcnt({2 if QFIRST else 7})")
    A("v_add_u32 v19, 1, v19")

    def wg_flag(sreg, base):
        Lnf = A.label("noflag")
        A("s_barrier")
        A("s_cmp_lg_u32 s3, 0")
        A(f"s_cbranch_scc1 {Lnf}")
        A(f"s_lshl_b32 s63, s{sreg}, {F}")
        A(f"s_add_u32 s63, s63, {G.WS_FW + (base << F):#x}")
        own_flag()
        A(f"{Lnf}:")
    A(f"s_cmp_ge_u32 s{sT}, 64")
    A(f"s_cbranch_scc1 {Lw2r}")
    front.w1_issue(A, G, sT, 40960)
    front.w2_issue(A, G, sT)
    ST(40)
    A("s_waitcnt vmcnt(10)")
    A("s_barrier")
    ST(42)
    front.w1_process(A, G, sT, 40960, 96)
    front.w2_addrs(A, G, sT)
    A("s_waitcnt vmcnt(0)")
    wg_flag(sT, 64)
    ST(43)
    front.w2_process(A, G, 56)
    A("s_waitcnt vmcnt(0)")
    wg_flag(sT, 0)
    ST.sync()
    A(f"s_branch {Lhdone}")
    A(f"{Lw2r}:")
    A(f"s_lshl_b32 s41, s{sT}, 1")
    A("s_sub_u32 s41, s41, 64")
    A(f"s_add_u32 s{sT}, s41, 1")
    front.w1_issue(A, G, 41, 0)
    front.w1_issue(A, G, sT, 40960)
    ST(40)
    A("s_waitcnt vmcnt(10)")
    A("s_barrier")
    ST(42)
    front.w1_process(A, G, 41, 0, 56)
    A("s_waitcnt vmcnt(10)")
    A("s_barrier")
    front.w1_process(A, G, sT, 40960, 96)
    A("s_waitcnt vmcnt(10)")
    wg_flag(41, 64)
    ST(43)
    ST.sync()
    A(f"{Lhw1}:")
    A("s_waitcnt vmcnt(0)")
    wg_flag(sT, 64)
    A(f"s_branch {Lhdone}")
    A(f"{Lidle}:")
    if CODEPF:
        Lpc = A.label("pc")
        A(f"s_getpc_b64 s[{RA}:{RA+1}]")
        A(f"{Lpc}:")
        A(f"s_sub_u32 s{RA}, s{RA}, {Lpc}-{name}")
        A(f"s_subb_u32 s{RA+1}, s{RA+1}, 0")
        A(f"s_mov_b32 s{RA+2}, {Lend}-{name}")
        A(f"s_mov_b32 s{RA+3}, 0x20000")
        A("s_lshl_b32 s51, s3, 13")
        A("v_lshlrev_b32 v24, 7, v0")
        nt, A.nt_srds = A.nt_srds, ()
        for i in range(2):
            A(f"buffer_load_dword v{56+i}, v24, {SA}, s51 offen")
            A("s_add_u32 s51, s51, 0x8000")
        A.nt_srds = nt
    if env("PGT", 0):
        A(f"v_lshlrev_b32 v24, {env('PGS', 17)}, v0")
        A(f"s_lshl_b32 s51, s3, {env('PGS', 17)+6}")
        for i in range(5 << (17 - env('PGS', 17)) >> 2 | 1):
            A(f"buffer_load_dword v58, v24, {WS}, s51 offen")
            A(f"s_add_u32 s51, s51, {1 << (env('PGS', 17)+8):#x}")
        A(f"buffer_load_dword v58, v24, {WS}, s51 offen")
        A("buffer_load_dword v59, v24, s[20:23], 0 offen")
    A("s_waitcnt vmcnt(0)")
    A("v_add_u32 v19, 1, v19")
    A("s_barrier")
    A(f"{Lhdone}:")
    ST(38)
    w2_addr()
    rot_tables()
    fw1_addr()
    ST.sync()
    A(f"{Lw1poll}:")
    A(fw)
    A("s_waitcnt vmcnt(0)")
    spin(tok_test, fw)
    ST(28)
    w1_dma()
    if HTOUCH:
        A("s_cmp_lt_u32 s47, 20")
        A(f"s_cbranch_scc1 {Ljoin}")
        w2_touch(True)
    ST.sync()
    A(f"{Ljoin}:")
    ST(60)
    ST.sync()
    A("s_cmp_ge_u32 s3, 2")
    A(f"s_cbranch_scc1 {Ldma}")

    A("v_and_b32 v24, 3, v0")
    A("v_lshrrev_b32 v25, 2, v0")
    A("v_lshlrev_b32 v26, 8, v25")
    A("v_lshl_add_u32 v26, v24, 3, v26")
    A("v_lshrrev_b32 v27, 2, v25")
    A("v_lshlrev_b32 v27, 11, v27")
    A("v_and_b32 v28, 3, v25")
    A("v_lshl_add_u32 v27, v28, 8, v27")
    A("v_lshl_add_u32 v27, v24, 4, v27")
    A("s_lshl_b32 s54, s3, 2")
    A("s_add_u32 s54, s54, s53")
    A(f"s_mul_i32 s54, s54, {RB_XN}")
    A("s_bfe_u32 s55, s58, 0x10002")
    A("s_mul_i32 s51, s55, 20480")
    A("s_add_u32 s51, s51, s54")
    A("s_lshl_b32 s55, s55, 10")
    A("s_add_u32 s54, s54, s55")
    A("s_and_b32 s55, s58, 3")
    A("s_lshl_b32 s55, s55, 5")
    A("s_add_u32 s51, s51, s55")
    A("s_lshl_b32 s55, s55, 1")
    A("s_add_u32 s54, s54, s55")
    S = 176

    def row_stats():
        A(f"v_add_f32 v{S}, v{S}, v{S+1}")
        A(f"v_add_f32 v{S+2}, v{S+2}, v{S+3}")
        A("s_nop 1")
        for ror in (4, 8):
            A(f"v_add_f32_dpp v{S}, v{S}, v{S} row_ror:{ror} row_mask:0xf bank_mask:0xf")
            A(f"v_add_f32_dpp v{S+2}, v{S+2}, v{S+2} row_ror:{ror} row_mask:0xf bank_mask:0xf")
            A("s_nop 0" if ror == 4 else f"v_mov_b32 v{S+1}, v{S}")
        for w in (16, 32):
            if w == 32: A(f"v_mov_b32 v{S+1}, v{S}")
            A(f"v_mov_b32 v{S+3}, v{S+2}")
            A("s_nop 0")
            A(f"v_permlane{w}_swap_b32 v{S}, v{S+1}")
            A(f"v_permlane{w}_swap_b32 v{S+2}, v{S+3}")
            A(f"v_add_f32 v{S}, v{S}, v{S+1}")
            A(f"v_add_f32 v{S+2}, v{S+2}, v{S+3}")
        ln_stats(A, S, S + 2, S + 4, S + 6, S + 1)
        A(f"v_mul_f32 v{S+4}, -v{S+4}, v{S+6}")
        A(f"v_mov_b32 v{S+7}, v{S+6}")
        A(f"v_mov_b32 v{S+5}, v{S+4}")

    def acc_stats(x, first):
        if first:
            A(f"v_mov_b32 v{S}, v{x}\nv_mov_b32 v{S+1}, v{x+1}")
            A(f"v_pk_mul_f32 {v(S+2,2)}, {v(x,2)}, {v(x,2)}")
        else:
            A(f"v_pk_add_f32 {v(S,2)}, {v(S,2)}, {v(x,2)}")
            A(f"v_pk_fma_f32 {v(S+2,2)}, {v(x,2)}, {v(x,2)}, {v(S+2,2)}")
    for i in range(20):
        unpack(A, X + 2 * i, X + 2 * i + 1, T + i)
        acc_stats(X + 2 * i, i == 0)
    for j in range(3):
        A(f"v_add_u32 v{188+j}, {64*j}, v0")
        A(f"v_min_u32 v{188+j}, 159, v{188+j}")
        A(f"v_lshlrev_b32 v{188+j}, {F}, v{188+j}")
    A("s_lshr_b32 s55, s24, 1")
    A(f"s_mul_i32 s55, s55, {160<<F}")
    A(f"s_add_u32 s55, s55, {G.WS_FY:#x}")
    fy = "\n".join(f"buffer_load_dword v{192+j}, v{188+j}, {WS}, s55 offen sc1" for j in range(3))
    A(fy)
    row_stats()
    for i in range(20):
        A(f"v_pk_fma_f32 {v(Y+2*i,2)}, {v(X+2*i,2)}, {v(S+6,2)}, {v(S+4,2)}")
    A("s_waitcnt vmcnt(0)")
    n1 = spin.n
    spin(lambda: A("v_xor_b32 v195, v192, v19\nv_xor_b32 v196, v193, v19\nv_xor_b32 v197, v194, v19\n"
                   "v_or3_b32 v195, v195, v196, v197\nv_cmp_ne_u32 vcc, 0, v195"), fy)
    ST(33)
    for i in range(5):
        A(f"s_add_u32 s55, s51, {G.WS_YF + 4096*i:#x}")
        for hh in range(2):
            A(f"buffer_load_dwordx2 {v(TY+4*i+2*hh,2)}, v26, {WS}, s55 offen offset:{128*hh} sc1")
    for i in range(20):
        if i % 2 == 0: A(f"s_waitcnt vmcnt({9-i//2})")
        t_ = 28 + 2 * (i & 1)
        unpack(A, t_, t_ + 1, TY + i)
        A(f"v_pk_fma_f32 {v(X+2*i,2)}, {v(t_,2)}, {v(Y+2*i,2)}, {v(X+2*i,2)}")
        acc_stats(X + 2 * i, i == 0)
        if i == 18 and EARLYB: A("s_barrier")
    row_stats()
    vm = G.VM(A)
    for i in range(5):
        for j in range(4):
            x = X + 8 * i + 2 * j; y = Y + 8 * i + 2 * j
            A(f"v_pk_fma_f32 {v(y,2)}, {v(x,2)}, {v(S+6,2)}, {v(S+4,2)}")
            A(f"v_cvt_pk_bf16_f32 v{TY+4*i+j}, v{y}, v{y+1}")
        A(f"s_add_u32 s55, s54, {G.WS_XN + 8192*i:#x}")
        vm.issue(f"buffer_store_dwordx4 {v(TY+4*i,4)}, v27, {WS}, s55 offen sc1")
    for i in range(5):
        for j in range(4):
            x = X + 8 * i + 2 * j
            A(f"v_cvt_pk_bf16_f32 v{T+4*i+j}, v{x}, v{x+1}")
        A(f"s_add_u32 s55, s54, {G.WS_X1 + 8192*i:#x}")
        q = vm.issue(f"buffer_store_dwordx4 {v(T+4*i,4)}, v27, {WS}, s55 offen sc1")
    ST(31)
    A(f"s_lshl_b32 s63, s3, {7+F}")
    A("s_add_u32 s63, s63, s42")
    A(f"s_add_u32 s63, s63, {G.WS_FX:#x}")
    h_ = 0
    vm.wait(q)
    own_flag()
    ST(1)
    if not EARLYB: A("s_barrier")
    ST.sync()
    A(f"s_branch {Lgo}")
    A(f"{Ldma}:")
    if HTOUCH:
        Lnt = A.label("notouch")
        A("s_cmp_ge_u32 s47, 20")
        A(f"s_cbranch_scc1 {Lnt}")
        w2_touch(False)
        A(f"{Lnt}:")
    vm = G.VM(A); vm.n = 36
    vm.issue(fw2)
    vm.wait_all()
    spin.n = 15
    spin(tok_test, fw2)
    spin.n = n1 + 1
    ST(1)
    A("s_barrier")
    ST.sync()
    A(f"{Lgo}:")
    P1 = env("P1", 20)
    for n in range(P1):
        A(w2_load(n))
    vm = G.VM(A); vm.n = 1 + P1
    w2_rest = list(range(NW2C + W2PRE, 70))
    ST(2)
    A("s_mul_i32 s51, s26, 10")
    A("s_lshl_b32 s54, s28, 2")
    A("s_add_u32 s54, s54, s51")
    A("v_add_u32 v24, s54, v21")
    A("v_lshlrev_b32 v24, 8, v24")
    A("v_lshl_add_u32 v24, v22, 3, v24")
    A("s_lshl_b32 s51, s51, 1")
    A("s_add_u32 s51, s51, 16")
    A("v_add_u32 v25, s51, v21")
    A("v_lshlrev_b32 v25, 7, v25")
    A("v_lshl_add_u32 v25, v22, 3, v25")
    XSH = 320 // (32 >> G1MAP)
    A(f"s_and_b32 s51, s47, {(32>>G1MAP)-1}")
    A(f"s_mul_i32 s51, s51, {XSH}")
    A(f"v_min_u32 v12, {min(XSH,64)-1}, v0")
    A("v_add_u32 v12, s51, v12")
    A("v_lshlrev_b32 v12, 7, v12")
    A(f"s_and_b32 s51, s26, {7 >> G2MAP}")
    A(f"s_mul_i32 s51, s51, {28 << G2MAP}")
    A(f"v_min_u32 v21, {(28 << G2MAP) - 1}, v0")
    A("v_add_u32 v21, s51, v21")
    A("v_lshlrev_b32 v21, 7, v21")

    def touch(kind, L, st):
        if not TOUCH: return
        if kind == "x":
            A(f"s_add_u32 s55, s30, {G.WS_XN + L*G.SZ_SD + st*4*RB_XN:#x}")
            vm.issue(f"buffer_load_dword v254, v12, {WS}, s55 offen sc1")
            if XSH > 64:
                vm.issue(f"buffer_load_dword v254, v12, {WS}, s55 offen offset:{(XSH-64)*128} sc1")
        else:
            A(f"s_add_u32 s55, s32, {G.WS_HF + L*G.SZ_HF + st*4*RB_HF:#x}")
            vm.issue(f"buffer_load_dword v254, v21, {WS}, s55 offen sc1")

    def y_tiles():
        for st in range(2):
            for j in range(4, 6):
                A(f"v_mov_b32 v{YS+6*st+j}, 0")
                A(f"v_mov_b32 v{XS+6*st+j}, 0")
            A(f"s_add_u32 s55, s35, {G.WS_YF + st*8*20480:#x}")
            vm.issue(f"buffer_load_dwordx2 {v(YS+6*st,2)}, v24, {WS}, s55 offen sc1")
            vm.issue(f"buffer_load_dwordx2 {v(YS+6*st+2,2)}, v24, {WS}, s55 offen offset:128 sc1")
            vm.issue(f"s_mov_b64 exec, s[56:57]\nbuffer_load_dwordx2 {v(YS+6*st+4,2)}, v25, {WS}, s55 offen sc1\ns_mov_b64 exec, -1")

    def flag_load(kind, L, st):
        base = (G.WS_FX if kind == "x" else G.WS_FH) + L * (2048 << F) + st * (128 << F)
        sreg, vreg = (40, 13) if kind == "x" else (44, 13)
        return f"s_add_u32 s55, s{sreg}, {base:#x}\nbuffer_load_dword v18, v{vreg}, {WS}, s55 offen sc1"

    def flag_store(kind, L, st):
        base = (G.WS_FX if kind == "x" else G.WS_FH) + L * (2048 << F) + st * (128 << F)
        sreg = 42 if kind == "x" else 46
        return (f"s_add_u32 s55, s{sreg}, {base:#x}\ns_mov_b64 exec, 1\n"
                f"buffer_store_dword v19, v20, {WS}, s55 offen{FSC}\ns_mov_b64 exec, -1")

    def check_flag(seq, kind, L, st):
        vm.wait(seq)
        spin(tok_test, flag_load(kind, L, st))
        touch(kind, L, st)

    def publish(q, kind, L, st):
        vm.wait(q)
        if kind == "h":
            vm.issue(flag_store(kind, L, st))
            return
        Ls = A.label("nopub")
        A("s_barrier")
        A("s_cmp_lg_u32 s3, 0")
        A(f"s_cbranch_scc1 {Ls}")
        A(flag_store(kind, L, st))
        A(f"{Ls}:")

    def rdA(ks, t):
        off = ks * 7168 + t * 1024
        A(f"ds_read_b128 {v(AF+4*t,4)}, v{2+(off>>16)} offset:{off & 0xffff}")

    def own_pairs(st):
        b = BANK[st]
        return [b, b + 2, b + 4, b + 6, b + 16, b + 18]

    def sum_regs(st):
        b = BANK[st]
        return [b + 20 + 2 * i for i in range(10)] + [b + 8 + 2 * i for i in range(4)] + [244, 246]

    def sums_loads(st):
        out = []
        for p, r in enumerate(sum_regs(st)):
            pre = f"s_add_u32 s61, s48, {G.WS_SUM + st*8*8192 + (p>>3)*4096:#x}\n" if p % 8 == 0 else ""
            out.append(pre + f"buffer_load_dwordx2 {v(r,2)}, v14, {WS}, s61 offen offset:{512*(p&7)} sc1")
        return out

    def phase_E(E, st, box):
        b = BANK[st]
        SUr = sum_regs(st)
        U = 216
        E.wait(box)

        def test():
            A(f"v_pk_add_f32 {v(U,2)}, {v(SUr[0],2)}, {v(SUr[1],2)}")
            A(f"v_pk_add_f32 {v(U+2,2)}, {v(SUr[2],2)}, {v(SUr[3],2)}")
            for p in range(4, 16, 2):
                A(f"v_pk_add_f32 {v(U,2)}, {v(U,2)}, {v(SUr[p],2)}")
                A(f"v_pk_add_f32 {v(U+2,2)}, {v(U+2,2)}, {v(SUr[p+1],2)}")
            A(f"v_pk_add_f32 {v(U,2)}, {v(U,2)}, {v(U+2,2)}")
            A(f"v_cmp_u_f32 vcc, v{U}, v{U+1}")
        E.atom(lambda: (ST(34 + 2 * st), spin(test, "\n".join(sums_loads(st))), ST(35 + 2 * st)), 4)
        Z = b + 20
        for h in range(2):
            E(f"v_mov_b32 v{Z+4*h}, v{U+h}")
            E(f"v_mov_b32 v{Z+4*h+2}, v{U+h}")
        E("s_nop 1")
        for h in range(2):
            E(f"v_permlane16_swap_b32 v{Z+4*h}, v{Z+4*h+2}")
        for h in range(4):
            E(f"v_mov_b32 v{Z+2*h+1}, v{Z+2*h}")
        E("s_nop 1")
        for h in range(4):
            E(f"v_permlane32_swap_b32 v{Z+2*h}, v{Z+2*h+1}")
        S1, S2, SA_, SB_, SC, SD, SE, SF = range(Z, Z + 8)
        M2, R2, M3, R3, T0, T1, T2 = Z + 8, Z + 10, Z + 12, Z + 14, Z + 16, Z + 17, Z + 18
        E(f"v_mov_b32 v{T0}, v{S1}")
        E(f"v_mov_b32 v{T1}, v{S2}")
        ln_stats(E, T0, T1, M2, R2, T2)
        E(f"v_fma_f32 v{T0}, -v{M2}, v{SE}, v{SA_}")
        E(f"v_mul_f32 v{T1}, v{M2}, v{SF}")
        E(f"v_fma_f32 v{S1}, v{R2}, v{T0}, v{S1}")
        E(f"v_fma_f32 v{T0}, -v{M2}, v{SA_}, v{SB_}")
        E(f"v_fma_f32 v{T1}, -2.0, v{SD}, v{T1}")
        E(f"v_add_f32 v{T0}, v{T0}, v{T0}")
        E(f"v_fma_f32 v{T1}, v{M2}, v{T1}, v{SC}")
        E(f"v_mul_f32 v{M2}, -v{M2}, v{R2}")
        E(f"v_fma_f32 v{T0}, v{R2}, v{T1}, v{T0}")
        E(f"v_mov_b32 v{R2+1}, v{R2}")
        E(f"v_fma_f32 v{S2}, v{R2}, v{T0}, v{S2}")
        E(f"v_mov_b32 v{M2+1}, v{M2}")
        ln_stats(E, S1, S2, M3, R3, T2)
        E(f"v_mul_f32 v{M3}, -v{M3}, v{R3}")
        E(f"v_mov_b32 v{R3+1}, v{R3}")
        E(f"v_mov_b32 v{M3+1}, v{M3}")
        XN = b + 8
        O = own_pairs(st)
        for j in range(6):
            y = U + 2 * (j & 1); d = Z + 2 + 2 * (j & 1)
            unpack(E, y, y + 1, YS + 6 * st + j)
            E(f"v_pk_fma_f32 {v(d,2)}, {v(O[j],2)}, {v(R2,2)}, {v(M2,2)}")
            E(f"v_pk_fma_f32 {v(O[j],2)}, {v(d,2)}, {v(y,2)}, {v(O[j],2)}")
            E(f"v_pk_fma_f32 {v(d,2)}, {v(O[j],2)}, {v(R3,2)}, {v(M3,2)}")
            E(f"v_cvt_pk_bf16_f32 v{XN+j}, v{d}, v{d+1}")
            if j == 3:
                E.issue(f"s_add_u32 s55, s36, {G.WS_XN + G.SZ_SD + st*4*RB_XN:#x}\n"
                        f"buffer_store_dwordx4 {v(XN,4)}, v8, {WS}, s55 offen sc1")
        q = E.issue(f"s_add_u32 s55, s36, {G.WS_XN + G.SZ_SD + st*4*RB_XN:#x}\ns_mov_b64 exec, s[56:57]\n"
                    f"buffer_store_dwordx2 {v(XN+4,2)}, v9, {WS}, s55 offen sc1\ns_mov_b64 exec, -1")
        for j in range(6):
            E(f"v_cvt_pk_bf16_f32 v{XS+6*st+j}, v{O[j]}, v{O[j]+1}")
        return q

    def g1_epilogue(L, st):
        A("s_nop 4")
        A(f"s_add_u32 s54, s34, {G.WS_HF + L*G.SZ_HF + st*4*RB_HF:#x}")
        last = None
        for t in range(7):
            for rb in range(2):
                c = ACC + 8 * t + 4 * rb
                A(f"v_permlane32_swap_b32 v{c}, v{c+2}")
                A(f"v_permlane32_swap_b32 v{c+1}, v{c+3}")
            for rb in range(2):
                c = ACC + 8 * t + 4 * rb
                A(f"v_pk_mul_f32 {v(c,2)}, {v(c,2)}, {v(c+2,2)}")
            for rb in range(2):
                c = ACC + 8 * t + 4 * rb
                d = ACC + (0 if t < 4 else 32) + 4 * rb + (t & 3)
                A(f"v_cvt_pk_bf16_f32 v{d}, v{c}, v{c+1}")
            if t == 3:
                for rb in range(2):
                    vm.issue(f"buffer_store_dwordx4 {v(ACC+4*rb,4)}, v7, {WS}, s54 offen offset:{1024*rb} sc1")
        for rb in range(2):
            x = ACC + 32 + 4 * rb
            A(f"v_mov_b32 v{24+4*rb}, v{x+2}")
            A(f"v_mov_b32 v{25+4*rb}, v{x}")
        A("s_nop 0")
        for rb in range(2):
            x = ACC + 32 + 4 * rb
            A(f"v_permlane16_swap_b32 v{24+4*rb}, v{x+3}")
            A(f"v_permlane16_swap_b32 v{25+4*rb}, v{26+4*rb}")
        A("s_nop 0")
        for rb in range(2):
            x = ACC + 32 + 4 * rb
            A(f"v_mov_b32_dpp v{26+4*rb}, v{x+1} quad_perm:[0,1,2,3] row_mask:0x8 bank_mask:0xf")
        A("s_nop 1")
        for rb in range(2):
            x = ACC + 32 + 4 * rb
            A(f"v_permlane32_swap_b32 v{26+4*rb}, v{x+3}")
        A("s_mov_b32 exec_hi, 0xffff")
        for rb in range(2):
            last = vm.issue(f"buffer_store_dwordx4 {v(ACC+32+4*rb,4)}, v7, {WS}, s54 offen offset:{2048+1024*rb} sc1")
        A("s_mov_b32 exec_hi, -1")
        return last

    def g2_side(E, L, st, xbox):
        b = BANK[st]
        O = own_pairs(st)
        E.mark(2)
        E("s_barrier")
        if xbox: E.wait(xbox)
        for j in range(6):
            unpack(E, O[j], O[j] + 1, XS + 6 * st + j)
        if L == 0:
            for j in range(6):
                unpack(E, YU[j], YU[j] + 1, YS + 6 * st + j)
                if j == 0:
                    E(f"v_mov_b32 v{EF[0]}, v{YU[0]}\nv_mov_b32 v{EF[0]+1}, v{YU[0]+1}")
                    E(f"v_pk_mul_f32 {v(EF[1],2)}, {v(YU[0],2)}, {v(YU[0],2)}")
                else:
                    E(f"v_pk_add_f32 {v(EF[0],2)}, {v(EF[0],2)}, {v(YU[j],2)}")
                    E(f"v_pk_fma_f32 {v(EF[1],2)}, {v(YU[j],2)}, {v(YU[j],2)}, {v(EF[1],2)}")
            E(f"v_add_f32 v{EF[0]}, v{EF[0]}, v{EF[0]+1}")
            E(f"v_add_f32 v{EF[1]}, v{EF[1]}, v{EF[1]+1}")
        E.mark(8)
        for t in range(5):
            E(f"ds_write_b128 v15, {v(b+20+4*t,4)} offset:{1024*t}")
        E.mark(9)
        E("s_waitcnt lgkmcnt(0)\ns_barrier")
        for n, t in enumerate((0, 1, 4)):
            E(f"ds_read_b128 {v(b+20+4*n,4)}, v16 offset:{1024*t}")
        for n, t in enumerate((2, 3, 4)):
            E(f"ds_read_b128 {v(b+32+4*n,4) if n < 2 else v(216,4)}, v1 offset:{1024*t}")
        E.mark(10)
        E("s_waitcnt lgkmcnt(0)\ns_barrier")
        for j in range(6):
            src = b + 32 + 2 * j if j < 4 else 216 + 2 * (j - 4)
            E(f"v_pk_add_f32 {v(b+20+2*j,2)}, {v(b+20+2*j,2)}, {v(src,2)}")

    def g2_tail(E, L, st, mid=None):
        b = BANK[st]
        O = own_pairs(st)
        for t in (2, 3, 4):
            E(f"ds_write_b128 v15, {v(b+4*t,4)} offset:{1024*t}")
        E("s_nop 3")
        for j in range(4):
            E(f"v_pk_add_f32 {v(O[j],2)}, {v(O[j],2)}, {v(b+20+2*j,2)}")
        E("s_waitcnt lgkmcnt(0)\ns_barrier")
        RC = [b + 32, b + 36, b + 8]
        for n, t in enumerate((2, 3, 4)):
            E(f"ds_read_b128 {v(RC[n],4)}, v17 offset:{1024*t}")
        for j in (4, 5):
            E(f"v_pk_add_f32 {v(O[j],2)}, {v(O[j],2)}, {v(b+20+2*j,2)}")
        if mid: mid()
        for j in range(6):
            if j % 2 == 0: E(f"s_waitcnt lgkmcnt({2-j//2})")
            E(f"v_pk_add_f32 {v(O[j],2)}, {v(O[j],2)}, {v(RC[j//2]+2*(j&1),2)}")
        if L == 1:
            P = b + 20
            for j in range(6):
                E(f"v_cvt_pk_bf16_f32 v{P+j}, v{O[j]}, v{O[j]+1}")
            E.issue(f"s_add_u32 s55, s38, {st*128*1280}\nbuffer_store_dwordx4 {v(P,4)}, v10, s[20:23], s55 offen")
            E.issue(f"s_add_u32 s55, s38, {st*128*1280}\ns_mov_b64 exec, s[56:57]\n"
                    f"buffer_store_dwordx2 {v(P+4,2)}, v11, s[20:23], s55 offen\ns_mov_b64 exec, -1")
            return None
        for j in range(4):
            E(f"v_cndmask_b32 v{b+16+j}, 0, v{b+16+j}, s[56:57]")
        Z = b + 20
        for j in range(6):
            x = O[j]; y = YU[j]; p = b + 8 + 2 * (j & 1)
            if j == 0: p = Z + 4
            E(f"v_pk_mul_f32 {v(p,2)}, {v(x,2)}, {v(y,2)}")
            terms = [(x, None), (x, x), (p, None), (p, x), (p, p), (p, y)]
            for n, (u, w) in enumerate(terms):
                z = Z + 2 * n
                if j == 0:
                    if w is not None: E(f"v_pk_mul_f32 {v(z,2)}, {v(u,2)}, {v(w,2)}")
                elif w is None:
                    first = O[0] if (j == 1 and n == 0) else z
                    E(f"v_pk_add_f32 {v(z,2)}, {v(first,2)}, {v(u,2)}")
                else:
                    E(f"v_pk_fma_f32 {v(z,2)}, {v(u,2)}, {v(w,2)}, {v(z,2)}")
        for n in range(6):
            E(f"v_add_f32 v{Z+2*n}, v{Z+2*n}, v{Z+2*n+1}")
        sr = [Z + 2 * n for n in range(6)] + EF
        E(f"v_permlane32_swap_b32 v{sr[6]}, v{sr[7]}")
        for n in range(3):
            E(f"v_permlane32_swap_b32 v{sr[2*n]}, v{sr[2*n+1]}")
        for n in (3, 0, 1, 2):
            E(f"v_add_f32 v{sr[2*n]}, v{sr[2*n]}, v{sr[2*n+1]}")
        E("s_nop 0")
        E(f"v_permlane16_swap_b32 v{sr[0]}, v{sr[2]}")
        E(f"v_permlane16_swap_b32 v{sr[4]}, v{sr[6]}")
        E(f"v_add_f32 v{b+12}, v{sr[0]}, v{sr[2]}")
        E(f"v_add_f32 v{b+13}, v{sr[4]}, v{sr[6]}")
        return E.issue(f"s_add_u32 s55, s49, {G.WS_SUM + st*8*8192:#x}\n"
                       f"buffer_store_dwordx2 {v(b+12,2)}, v14, {WS}, s55 offen{FSC}")

    PH = [("g1", 0, 20), ("g1", 1, 20), ("g2", 0, 14), ("g2", 1, 14)]
    D = Side(A, vm, True)
    carry = {}
    for L in range(2):
        stream = []
        for kind, st, n in PH:
            stream += [(kind, st, i) for i in range(n)]
        seqs = {}
        state = {"next": 0, "gate": 0, "cur": 0}
        Q = []
        phase_of = lambda n: 0 if n < 20 else 1 if n < 40 else 2 if n < 54 else 3

        def entry_ops(n):
            kind, st, i = stream[n]
            r = RING + 8 * (n % R)
            if kind == "g1":
                o = 2048 * (i & 1)
                base = G.WS_XN + L * G.SZ_SD + st * 4 * RB_XN + (i & ~1) * 2048
                pre = f"s_add_u32 s52, s30, {base:#x}" if not i & 1 else None
                return [(None, pre, f"buffer_load_dwordx4 {v(r,4)}, v2, {WS}, s52 offen offset:{o} sc1"),
                        (n, None, f"buffer_load_dwordx4 {v(r+4,4)}, v2, {WS}, s52 offen offset:{o+1024} sc1")]
            base = G.WS_HF + L * G.SZ_HF + st * 4 * RB_HF
            vo = "v6" if i < 7 else "v5"
            return [(None, f"s_add_u32 s52, s{64 + i % 7}, {base:#x}", f"buffer_load_dwordx4 {v(r,4)}, {vo}, {WS}, s52 offen sc1"),
                    (n, None, f"buffer_load_dwordx4 {v(r+4,4)}, {vo}, {WS}, s52 offen offset:2048 sc1")]

        def refill():
            if Q: return
            n = state["next"]
            if n < len(stream) and n < state["cur"] + R and phase_of(n) < state["gate"]:
                Q.extend(entry_ops(n))
                state["next"] += 1

        def pre_slot():
            refill()
            if Q and Q[0][1]:
                A(Q[0][1]); Q[0] = (Q[0][0], None, Q[0][2])
                return True
            return False

        def slot():
            pre_slot()
            if Q:
                tag, _, text = Q.pop(0)
                q = vm.issue(text)
                if tag is not None: seqs[tag] = q
                return True
            return False

        def need(n):
            while n not in seqs:
                assert slot(), n
            vm.wait(seqs[n])

        def x1_load(st):
            A(f"s_add_u32 s55, s36, {G.WS_X1 + st*4*RB_XN:#x}")
            vm.issue(f"buffer_load_dwordx4 {v(XS+6*st,4)}, v8, {WS}, s55 offen sc1")
            return [vm.issue(f"s_mov_b64 exec, s[56:57]\nbuffer_load_dwordx2 {v(XS+6*st+4,2)}, v9, {WS}, s55 offen sc1\ns_mov_b64 exec, -1")]

        nrd = 7 if L == 0 else 6
        for t in range(nrd):
            rdA(0, t)
        if L == 1:
            Lfin = A.label("fin")
            A("s_lshl_b32 s51, s2, 2")
            A("s_add_u32 s51, s51, s3")
            A("s_cmp_lg_u32 s51, 1023")
            A(f"s_cbranch_scc1 {Lfin}")
            A("v_lshrrev_b32 v24, 3, v0")
            A(f"v_lshl_add_u32 v24, v24, {8+F}, v13")
            A(f"s_mov_b32 s55, {G.WS_FX:#x}")
            ld = "\n".join(f"s_mov_b32 s55, {G.WS_FX + (j << (5+F)):#x}\nbuffer_load_dword v{26+j}, v24, {WS}, s55 offen sc1" for j in range(4))
            A(ld)
            A("s_waitcnt vmcnt(0)")
            sn = spin.n
            spin.n = 14
            spin(lambda: A("\n".join(f"v_xor_b32 v{248+j}, v{26+j}, v19" for j in range(4)) +
                           "\nv_or3_b32 v248, v248, v249, v250\nv_or_b32 v248, v248, v251\nv_cmp_ne_u32 vcc, 0, v248"), ld)
            spin.n = sn
            A(f"s_mov_b32 s63, {G.WS_EPOCH:#x}")
            own_flag()
            A(f"{Lfin}:")
            vm.wait_all()
        if L == 0 and EARLYB:
            A("s_barrier")
        q = vm.issue(flag_load("x", L, 0))
        if L == 0:
            for n in range(P1, W2PRE):
                vm.issue(w2_load(n))
        if L == 1:
            for x in sums_loads(1):
                sq = vm.issue(x)
        check_flag(q, "x", L, 0)
        ST(3 + 16 * L)
        state["gate"] = 1
        pend_flag = {}
        if L == 0:
            for _ in range(2 * FILL0): slot()
            y_tiles()
        else:
            for _ in range(2 * FILL0): slot()
            ST(32)
            A.set_hook(slot, PACE)
            q = phase_E(D, 1, [sq])
            A.set_hook(None)
            pend_flag[5] = (q[0], "x", 1, 1)
            rdA(0, 6)
        if env("FULLFILL", 1):
            while slot(): pass
        ST(4 + 16 * L)
        GX = 12 if L == 0 else env("GX", 14)
        fl_at = {GX - 4: ("x", 1), 30: ("h", 0), env("FH1", 50): ("h", 1)}
        gate_at = {GX: ("x", 1), 34: ("h", 0)}
        flq = None
        xbox = [None, None]
        side = None
        for n, (kind, st, i) in enumerate(stream):
            state["cur"] = n
            if n in (20, 40, 54):
                ST({20: 6, 40: 8, 54: 10}[n] + 16 * L)
            if env("DBG1", 0) and L == 0 and n in (1, 4, 8, 12, 13, 16, 24, 28, 34, 35):
                ST({1: 16, 4: 17, 8: 40, 12: 41, 13: 15, 16: 18, 24: 42, 28: 43, 34: 38, 35: 39}[n])
            if n in gate_at:
                check_flag(flq, gate_at[n][0], L, gate_at[n][1])
                state["gate"] += 1
                if L == 0 and n == 34: xbox[0] = x1_load(0)
            if n in pend_flag:
                q, k_, L_, st_ = pend_flag.pop(n)
                publish(q, k_, L_, st_)
            if n in fl_at:
                flq = vm.issue(flag_load(fl_at[n][0], L, fl_at[n][1]))
            if kind == "g2" and i == 0:
                side = Side(A, vm, False)
                g2_side(side, L, st, xbox[st])
                side2 = Side(A, vm, False)
                if L == 0 and st == 1:
                    side2.mark(env("SUMAT", 6))
                    for x in sums_loads(0):
                        sbox = side2.issue(x)
                    side2.mark(env("EAT", 12))
                    carry["xa"] = phase_E(side2, 0, sbox)
            need(n)
            r = RING + 8 * (n % R)
            if kind == "g1":
                more = not (st == 1 and i == 19)
                if i == 0 and st == 0:
                    A("s_waitcnt lgkmcnt(6)")
                for t in range(7):
                    c = ACC + 8 * t
                    for rb in range(2):
                        srcc = "0" if i == 0 else v(c + 4 * rb, 4)
                        A(f"v_mfma_f32_16x16x32_bf16 {v(c+4*rb,4)}, {v(AF+4*t,4)}, {v(r+4*rb,4)}, {srcc}")
                        if rb == 0:
                            if more: A("s_waitcnt lgkmcnt(5)")
                            elif t < 6: A(f"s_waitcnt lgkmcnt({5-t})")
                            if t in (1, 3, 5, 6): slot()
                            if L == 0 and w2_rest and n >= env('W2FROM', 0) and (t == 0 or (t == 4 and len(w2_rest) > 39 - n)):
                                w2q = vm.issue(w2_load(w2_rest.pop(0)))
                    if more:
                        rdA((i + 1) % 20, t)
                    if t in (0, 2, 4, 5): pre_slot()
            else:
                if n == 40 and L == 0:
                    assert not w2_rest
                    vm.wait(w2q)
                b = BANK[st] + (20 if i < 7 else 0)
                j = i % 7
                order = [(k, t) for k in range(2) for t in range(5)]
                if i == 13:
                    order = [(k, t) for k in range(2) for t in (2, 3, 4)] + [(k, t) for k in range(2) for t in (0, 1)]
                if i == 7:
                    assert all(w is None or True for _, w in side.items)
                    side.pump(1 << 30, 7)
                    A("s_nop 1")
                for m, (k, t) in enumerate(order):
                    c = b + 4 * t
                    zero = j == 0 and k == 0 and (i < 7 or t in (2, 3))
                    A(f"v_mfma_f32_16x16x32_bf16 {v(c,4)}, {w2reg(5*(2*j+k)+t)}, {v(r+4*k,4)}, {'0' if zero else v(c,4)}")
                    used = 0
                    if m in (0, 2, 4, 6): used = pre_slot()
                    if m in (1, 3, 5, 7): used = slot()
                    if not used or m & 1 == 0:
                        nb = len(side.items)
                        side.pump(2 - used, i)
                        if len(side.items) == nb and (not side.items or i < 10 or True):
                            if not side.items or side.items[0][1] is None:
                                side2.pump(2 - used, i if not side.items else min(i, 11))
            last_of_phase = n + 1 in (20, 40, 54, 68)
            if last_of_phase:
                state["cur"] = n + 1
                ST({20: 5, 40: 7, 54: 9, 68: 11}[n + 1] + 16 * L)
                if kind == "g1":
                    A.set_hook(slot, PACE)
                    q = g1_epilogue(L, st)
                    pend_flag[n + 1 + (4 if st == 0 else env("PF1", 6))] = (q, "h", L, st)
                    A.set_hook(None)
                    continue
                side.flush()
                if st == 0:
                    def mid():
                        check_flag(flq, "h", L, 1)
                        state["gate"] += 1
                        if L == 0: xbox[1] = x1_load(1)
                        ST(14 + 16 * L)
                        for _ in range(env("G2FILL", 6)): slot()
                        A.set_hook(slot, env("PACE2", 4))
                    A("s_nop 2")
                    g2_tail(D, L, 0, mid)
                    A.set_hook(None)
                    while slot(): pass
                else:
                    side2.flush()
                    if L == 0: ST(12)
                    A("s_nop 2")
                    g2_tail(D, L, 1)
                    if L == 0:
                        publish(carry["xa"][0], "x", 1, 0)
                    ST(13 + 16 * L)
        assert not pend_flag and not Q
    ST.flush(2, 4)
    A(f"{Lend}:")
    A("s_endpgm")
    A.end_kernel(name, 512, 102, 256)
```
